```python
import torch

def _softmax(x, axis=-1):
    return torch.softmax(x, dim=axis)
def _gelu(x):
    return torch.nn.functional.gelu(x, approximate="tanh")
def _silu(x):
    return torch.nn.functional.silu(x)
def _sigmoid(x):
    return torch.sigmoid(x)
def _layernorm(x, axis=-1, eps=1e-5):
    m = x.mean(dim=axis, keepdim=True)
    v = x.var(dim=axis, keepdim=True, unbiased=False)
    return (x - m) / torch.sqrt(v + eps)
def _scatter_add(tgt, idx, src, axis=0):
    return tgt.clone().index_add_(axis, idx, src)
def _segment_sum(src, seg, n):
    out = torch.zeros((n,) + src.shape[1:], dtype=src.dtype)
    return out.index_add_(0, seg, src)
def _pad(x, pw):
    flat = tuple(v for pair in reversed(pw) for v in pair)
    return torch.nn.functional.pad(x, flat)

kernel_name = 'parallel_sum__sliding_block_cached__geglu_ffn__decode'

def setup_inputs():

    _w = (lambda a: (lambda t: t.to(torch.bfloat16) if t.is_floating_point() else t)(torch.as_tensor(a)))
    def _A_setup():
        B, Sq, D = 1, 1, 512
        Hq, Hkv, Sk, Dh = 32, 32, 32768, 128
        assert Hq % Hkv == 0, (Hq, Hkv)
        return {
            "x": _w((lambda *s: torch.randn(*s, dtype=torch.bfloat16) * 0.05)(B, Sq, D)),
            "k_cache": _w((lambda *s: torch.randn(*s, dtype=torch.bfloat16) * 3.2)(B, Hkv, Sk, Dh)),
            "v_cache": _w((lambda *s: torch.randn(*s, dtype=torch.bfloat16) * 1.6)(B, Hkv, Sk, Dh)),
            "wq": _w((lambda *s: torch.randn(*s, dtype=torch.bfloat16) * 3.2)(D, Hq * Dh) * (D ** -0.5)),
            "wo": _w((lambda *s: torch.randn(*s, dtype=torch.bfloat16) * 1.6)(Hq * Dh, D) * ((Hq * Dh) ** -0.5)),
        }
    _A_in = _A_setup()

    def _B_setup():
        B, S, D, F = 1, 1, 512, 1376
        return {
            "x": _w((lambda *s: torch.randn(*s, dtype=torch.bfloat16) * 0.05)(B, S, D)),
            "w_gate": _w((lambda *s: torch.randn(*s, dtype=torch.bfloat16) * 0.05)(D, F)),
            "w_up": _w((lambda *s: torch.randn(*s, dtype=torch.bfloat16) * 0.05)(D, F)),
            "w_down": _w((lambda *s: torch.randn(*s, dtype=torch.bfloat16) * 0.05)(F, D)),
        }
    _B_in = _B_setup()

    return {
        "A_x": _A_in["x"],
        "A_k_cache": _A_in["k_cache"],
        "A_v_cache": _A_in["v_cache"],
        "A_wq": _A_in["wq"],
        "A_wo": _A_in["wo"],
        "B_x": _B_in["x"],
        "B_w_gate": _B_in["w_gate"],
        "B_w_up": _B_in["w_up"],
        "B_w_down": _B_in["w_down"],
    }

def reference(A_x, A_k_cache, A_v_cache, A_wq, A_wo, B_x, B_w_gate, B_w_up, B_w_down):
    def _A_ref(x, k_cache, v_cache, wq, wo):
        B, Sq, D = x.shape
        Hq, Dh = 32, 128
        Hkv, Sk = k_cache.shape[1], k_cache.shape[2]
        W = min(4096, max(256, Sk // 4))
        rep = Hq // Hkv
        q = (lambda x, *d: x.permute(*d))((x @ wq).reshape(B, Sq, Hq, Dh), 0, 2, 1, 3)
        k = (lambda x, n, axis: torch.repeat_interleave(x, n, dim=axis))(k_cache[:, :, Sk - W:, :], rep, axis=1)
        v = (lambda x, n, axis: torch.repeat_interleave(x, n, dim=axis))(v_cache[:, :, Sk - W:, :], rep, axis=1)
        scores = torch.einsum("bhqd,bhkd->bhqk", q, k) * (Dh ** -0.5)
        p = _softmax(scores, axis=-1)
        o = torch.einsum("bhqk,bhkd->bhqd", p, v)
        return (lambda x, *d: x.permute(*d))(o, 0, 2, 1, 3).reshape(B, Sq, Hq * Dh) @ wo

    def _B_ref(x, w_gate, w_up, w_down):
        return (_gelu(x @ w_gate) * (x @ w_up)) @ w_down

    x = A_x
    xn = _layernorm(x, axis=-1)
    return x + _A_ref(xn, A_k_cache, A_v_cache, A_wq, A_wo) + _B_ref(xn, B_w_gate, B_w_up, B_w_down)
```

```python
import re
REG = re.compile(r'\b([vsa])(\d+)\b|\b([vsa])\[(\d+):(\d+)\]|\b(vcc|exec|m0|scc)\b')
TRANS = ("v_exp_f32", "v_log_f32", "v_rcp_f32", "v_rsq_f32", "v_sqrt_f32", "v_sin_f32", "v_cos_f32")
def regs_of(op):
    out = set()
    for m in REG.finditer(op):
        if m.group(1): out.add((m.group(1), int(m.group(2))))
        elif m.group(3):
            for i in range(int(m.group(4)), int(m.group(5)) + 1): out.add((m.group(3), i))
        else:
            out.add((m.group(6), 0))
    return out
class Ins:
    def __init__(self, text):
        self.text = text
        t = text.split(';')[0].strip()
        p = t.split(None, 1)
        self.op = p[0]
        rest = p[1] if len(p) > 1 else ""
        ops = []; cur = ""; depth = 0
        for ch in rest:
            if ch == '[': depth += 1
            if ch == ']': depth -= 1
            if ch == ',' and depth == 0: ops.append(cur.strip()); cur = ""
            else: cur += ch
        if cur.strip(): ops.append(cur.strip())
        self.mods = ""
        if ops:
            q = ops[-1].split(None, 1)
            if len(q) > 1 and not q[0].endswith(','):
                ops[-1] = q[0]; self.mods = q[1]
        self.ops = ops
        op = self.op
        self.valu = op.startswith("v_") and not op.startswith("v_mfma")
        self.mfma = op.startswith("v_mfma")
        self.vmem = op.startswith(("buffer_", "global_", "flat_"))
        self.ds = op.startswith("ds_")
        self.salu = op.startswith("s_")
        self.dpp = "_dpp" in op or any(k in self.mods for k in ("row_", "quad_perm", "wave_"))
        self.perm = op.startswith("v_permlane")
        self.trans = op.replace("_e32", "").replace("_e64", "") in TRANS
        self.dot = op.startswith("v_dot")
        self.rdlane = op.startswith(("v_readlane", "v_readfirstlane", "v_writelane"))
        base = op.replace("_dpp", "").replace("_e32", "").replace("_e64", "")
        self.base = base
        self.w = set(); self.r = set()
        if self.valu or self.mfma:
            self.w = regs_of(ops[0])
            srcs = ops[1:]
            if base in ("v_add_co_u32", "v_addc_co_u32", "v_sub_co_u32"):
                self.w |= regs_of(ops[1]); srcs = ops[2:]
            for o in srcs: self.r |= regs_of(o)
            if self.perm:
                self.w |= regs_of(ops[1]); self.r |= regs_of(ops[0])
            if base.startswith(("v_fmac", "v_dot2c")) or self.dpp:
                self.r |= regs_of(ops[0])
            if base == "v_cndmask_b32" and len(ops) == 3: self.r.add(("vcc", 0))
            self.srcC = regs_of(ops[3]) if self.mfma else set()
            self.srcAB = (regs_of(ops[1]) | regs_of(ops[2])) if self.mfma else set()
        elif self.vmem or self.ds:
            for o in ops: self.r |= regs_of(o)
            is_load = ("load" in op or "read" in op or ("atomic" in op and "sc0" in self.mods) or "_rtn" in op or "bpermute" in op or "swizzle" in op) and "lds" not in self.mods.split() and "load_lds" not in op
            if is_load:
                self.w = regs_of(ops[0]);
                self.r = set()
                for o in ops[1:]: self.r |= regs_of(o)
            if "lds" in self.mods.split() or "load_lds" in op: self.r.add(("m0", 0))
            self.wide_store = ("store_dwordx3" in op or "store_dwordx4" in op)
        elif self.salu:
            if op.startswith(("s_cmp", "s_bitcmp", "s_cbranch", "s_branch", "s_waitcnt", "s_nop", "s_barrier", "s_sleep", "s_endpgm", "s_setprio")):
                for o in ops: self.r |= regs_of(o)
            else:
                if ops: self.w = regs_of(ops[0])
                for o in ops[1:]: self.r |= regs_of(o)
                if "saveexec" in op: self.w.add(("exec", 0))
        self.states = 1
        if op == "s_nop": self.states = int(ops[0], 0) + 1
def V(s): return {x for x in s if x[0] in "va"}
def S(s): return {x for x in s if x[0] in ("s", "vcc")}
def passes(i):
    if "16x16x32" in i.op or "16x16x16" in i.op: return 4
    if "32x32" in i.op: return 8
    if "4x4x4" in i.op: return 2
    raise ValueError(i.op)
def need(p, c):
    n = 0
    if p.valu:
        vw = V(p.w); sw = S(p.w)
        if c.valu and c.dpp and vw & V(c.r): n = max(n, 2)
        if c.valu and c.perm and vw & V(c.r): n = max(n, 2)
        if c.valu and c.rdlane and vw & V(c.r): n = max(n, 1)
        if c.mfma and vw & V(c.r): n = max(n, 2)
        if p.trans and (c.valu and not c.trans or c.mfma) and vw & V(c.r): n = max(n, 1)
        if p.trans and (c.vmem or c.ds) and vw & V(c.r): n = max(n, 1)
        if p.dot and (c.valu or c.mfma or c.vmem or c.ds) and vw & (V(c.r) | V(c.w)):
            same = c.valu and c.base == p.base
            if same:
                ab = set()
                for o in c.ops[1:3]: ab |= regs_of(o)
                if vw & V(ab): n = max(n, 3)
            else: n = max(n, 3)
        if sw:
            if c.valu and sw & S(c.r): n = max(n, 4 if c.rdlane else 2)
            if c.vmem and sw & S(c.r): n = max(n, 5)
            if c.salu and (sw & S(c.r) or c.op.startswith("s_cbranch_vcc") and ("vcc", 0) in sw): n = max(n, 1)
        if ("exec", 0) in p.w and (c.valu or c.mfma): n = max(n, 5)
    if p.mfma:
        ps = passes(p); d = V(p.w)
        if c.mfma:
            if d & c.srcAB: n = max(n, {2: 5, 4: 8, 8: 12}[ps])
            if d & c.srcC and not (c.srcC == d and passes(c) == ps): n = max(n, {2: 4, 4: 6, 8: 10}[ps])
            if d & c.srcC and c.srcC == d and ps == 2: n = max(n, 2)
        elif (c.valu or c.vmem or c.ds) and d & (V(c.r) | V(c.w)): n = max(n, {2: 5, 4: 8, 8: 12}[ps])
        if c.valu and p.srcC & V(c.w): n = max(n, {2: 1, 4: 3, 8: 7}[ps])
    if p.vmem and getattr(p, "wide_store", False):
        data = regs_of(p.ops[1] if p.op.startswith("global") else p.ops[0])
        if V(data) & V(c.w): n = max(n, 2)
    if p.salu and ("m0", 0) in p.w and (c.vmem or c.ds) and ("m0", 0) in c.r: n = max(n, 1)
    return n
class Emit:
    def __init__(self):
        self.lines = []; self.hist = []; self.nops = 0
    def __call__(self, text):
        for ln in text.split("\n"):
            s = ln.strip()
            if not s or s.startswith(";"):
                if s: self.lines.append("    " + s)
                continue
            if s.endswith(":") or s.startswith("."):
                self.lines.append(s)
                continue
            i = Ins(s)
            dist = 0; req = 0
            for p in reversed(self.hist[-24:]):
                req = max(req, need(p, i) - dist)
                dist += p.states
            if req > 0:
                nop = Ins(f"s_nop {req-1}")
                self.lines.append(f"    s_nop {req-1}"); self.hist.append(nop); self.nops += 1
            self.lines.append("    " + s); self.hist.append(i)
    def text(self): return "\n".join(self.lines) + "\n"
```

```python
import sys, struct
from emit import Emit
NAME = "parallel_sum__sliding_block_cached__geglu_ffn__decode"
def f2u(x): return struct.unpack("<I", struct.pack("<f", x))[0]
LOG2E = 1.4426950408889634
X1 = 0x00000
X2 = 0x40000
ML = 0x50000
YY = 0x60000
ZZ = 0x70000
WSUSED = 0x80000
L_WO = 0; L_WD = 16384; L_O = 24576; L_ML = 28672; L_Q = 28736; L_AH = 28992; L_FLAG = 29120; L_SIZE = 29184
SPIN = 1 << 17

def gen(stamps=False, hmul=0x3779B1, hshift=13, hmask=127, chunk=1, kvflags="nt", wflags="nt", opt=None):
    opt = opt or {}
    e = Emit()
    nst = [0]
    def stamp(i):
        if stamps: e(f"s_memrealtime s[{60+2*i}:{61+2*i}]")
    NST = 12
    def stamp_out():
        if not stamps: return
        e("s_waitcnt lgkmcnt(0)")
        e(f"s_mul_i32 s58, s2, 9\ns_add_u32 s58, s58, s30\ns_mul_i32 s58, s58, {NST*8}")
        e("s_add_u32 s56, s26, 0x20000000\ns_addc_u32 s57, s27, 0")
        e("s_mov_b64 exec, 1\nv_mov_b32 v0, s58")
        for i in range(NST):
            e(f"v_mov_b32 v2, s{60+2*i}\nv_mov_b32 v3, s{61+2*i}\nglobal_store_dwordx2 v0, v[2:3], s[56:57] offset:{8*i}\ns_nop 1")
    if stamps:
        for i in range(NST): e(f"s_mov_b64 s[{60+2*i}:{61+2*i}], 0")
    stamp(0)
    e(f"""
s_cmp_ge_u32 s2, 256
s_cbranch_scc1 L_end
s_load_dwordx16 s[4:19], s[0:1], 0
s_load_dwordx8 s[20:27], s[0:1], 64
v_lshrrev_b32 v1, 6, v0
v_and_b32 v0, 63, v0
v_mov_b32 v2, 0
v_mov_b32 v3, {L_FLAG}
v_readfirstlane_b32 s30, v1
ds_write_b32 v3, v2
s_and_b32 s28, s2, 7
s_lshr_b32 s29, s2, 6
s_lshl_b32 s29, s29, 3
s_add_u32 s28, s28, s29
s_lshr_b32 s29, s2, 3
s_and_b32 s29, s29, 7
s_waitcnt lgkmcnt(0)
s_barrier
s_cmp_eq_u32 s30, 0
s_cbranch_scc1 L_aux
""")
    stamp(1)
    KB, VB = 8, 72
    e(f"""
s_lshl_b32 s40, s28, 23
s_lshl_b32 s41, s29, 17
s_add_u32 s40, s40, s41
s_add_u32 s40, s40, {(32768-4096)*256}
s_add_u32 s32, s6, s40
s_addc_u32 s33, s7, 0
s_and_b32 s33, s33, 0xffff
s_mov_b32 s34, 0x20000
s_mov_b32 s35, 0x20000
s_mul_i32 s42, s2, {hmul}
s_lshr_b32 s42, s42, {hshift}
s_and_b32 s42, s42, {hmask}
s_sub_u32 s43, s30, 1
s_mul_i32 s44, s43, {chunk}
s_xor_b32 s42, s42, s44
s_lshl_b32 s42, s42, 10
v_lshlrev_b32 v1, 4, v0
""")
    def idx(i): return ((i // chunk) * (chunk * 8) + i % chunk) * 1024
    for i in range(16):
        e(f"s_xor_b32 s41, s42, {idx(i)}")
        e(f"buffer_load_dwordx4 v[{KB+4*i}:{KB+4*i+3}], v1, s[32:35], s41 offen {kvflags}")
        if i == 0:
            e(f"""
s_add_u32 s36, s8, s40
s_addc_u32 s37, s9, 0
s_and_b32 s37, s37, 0xffff
s_mov_b32 s38, 0x20000
s_mov_b32 s39, 0x20000""")
    for i in range(16):
        e(f"s_xor_b32 s41, s42, {idx(i)}")
        e(f"buffer_load_dwordx4 v[{VB+4*i}:{VB+4*i+3}], v1, s[36:39], s41 offen {kvflags}")
    stamp(2)
    R = 140; ACC = 156; Q = 136
    for i in range(16): e(f"v_mov_b32 v{R+i}, 0")
    for i in range(8): e(f"v_mov_b32 v{ACC+i}, 0")
    e(f"""
v_mov_b32 v3, {L_FLAG}
v_and_b32 v4, 15, v0
v_lshlrev_b32 v4, 4, v4
s_mov_b32 s45, {SPIN}
L_qwait:
ds_read_b32 v2, v3
s_waitcnt lgkmcnt(0)
v_readfirstlane_b32 s46, v2
s_cmp_lg_u32 s46, 0
s_cbranch_scc1 L_qok
s_sleep 2
s_sub_u32 s45, s45, 1
s_cbranch_scc0 L_qwait
L_qok:
ds_read_b128 v[{Q}:{Q+3}], v4 offset:{L_Q}
s_waitcnt lgkmcnt(0)
""")
    stamp(3)
    for i in range(0, 16, 2):
        e(f"s_waitcnt vmcnt({32-(i+2)})")
        for k in range(4):
            e(f"v_dot2c_f32_bf16 v{R+i}, v{KB+4*i+k}, v{Q+k}")
            e(f"v_dot2c_f32_bf16 v{R+i+1}, v{KB+4*(i+1)+k}, v{Q+k}")
    stamp(4)
    for i in range(8):
        e(f"v_add_f32_dpp v{R+i}, v{R+i}, v{R+i} row_ror:8 row_mask:0xf bank_mask:0x3")
    for i in range(8):
        e(f"v_add_f32_dpp v{R+i}, v{R+i+8}, v{R+i+8} row_ror:8 row_mask:0xf bank_mask:0xc")
    for i in range(4):
        e(f"v_add_f32_dpp v{R+i}, v{R+i}, v{R+i} row_half_mirror row_mask:0xf bank_mask:0x5")
    for i in range(4):
        e(f"v_add_f32_dpp v{R+i}, v{R+i+4}, v{R+i+4} row_half_mirror row_mask:0xf bank_mask:0xa")
    for i in range(4):
        e(f"v_add_f32_dpp v{R+i}, v{R+i}, v{R+i} quad_perm:[1,0,3,2] row_mask:0xf bank_mask:0xf")
    for i in range(4):
        e(f"v_add_f32_dpp v{R+i}, v{R+i}, v{R+i} quad_perm:[2,3,0,1] row_mask:0xf bank_mask:0xf")
    S0 = R
    e(f"s_mov_b32 s47, {f2u(128 ** -0.5):#x}\ns_mov_b32 s48, 0xffff0000\ns_mov_b32 s49, {f2u(LOG2E):#x}")
    def rnd4():
        e(f"v_cvt_pk_bf16_f32 v{S0+4}, v{S0}, v{S0+1}")
        e(f"v_cvt_pk_bf16_f32 v{S0+5}, v{S0+2}, v{S0+3}")
        e(f"v_lshlrev_b32 v{S0}, 16, v{S0+4}")
        e(f"v_and_b32 v{S0+1}, s48, v{S0+4}")
        e(f"v_lshlrev_b32 v{S0+2}, 16, v{S0+5}")
        e(f"v_and_b32 v{S0+3}, s48, v{S0+5}")
    rnd4()
    for i in range(4): e(f"v_mul_f32 v{S0+i}, s47, v{S0+i}")
    rnd4()
    M = S0 + 6; T = S0 + 7
    e(f"v_max3_f32 v{M}, v{S0}, v{S0+1}, v{S0+2}")
    e(f"v_max_f32 v{M}, v{M}, v{S0+3}")
    e(f"v_max_f32_dpp v{M}, v{M}, v{M} row_ror:4 row_mask:0xf bank_mask:0xf")
    e(f"v_max_f32_dpp v{M}, v{M}, v{M} row_ror:8 row_mask:0xf bank_mask:0xf")
    e(f"v_mov_b32 v{T}, v{M}")
    e(f"v_permlane16_swap_b32 v{M}, v{T}")
    e(f"v_max_f32 v{M}, v{M}, v{T}")
    e(f"v_mov_b32 v{T}, v{M}")
    e(f"v_permlane32_swap_b32 v{M}, v{T}")
    e(f"v_max_f32 v{M}, v{M}, v{T}")
    for i in range(4): e(f"v_sub_f32 v{S0+i}, v{S0+i}, v{M}")
    for i in range(4): e(f"v_mul_f32 v{S0+i}, s49, v{S0+i}")
    for i in range(4): e(f"v_exp_f32 v{S0+i}, v{S0+i}")
    PL = S0 + 8; PH = S0 + 12
    for i in range(4): e(f"v_cvt_pk_bf16_f32 v{PL+i}, v{S0+i}, 0")
    for i in range(4): e(f"v_lshlrev_b32 v{PH+i}, 16, v{PL+i}")
    Lr = S0 + 4
    e(f"v_add_f32 v{Lr}, v{S0}, v{S0+1}")
    e(f"v_add_f32 v{T}, v{S0+2}, v{S0+3}")
    e(f"v_add_f32 v{Lr}, v{Lr}, v{T}")
    e(f"v_add_f32_dpp v{Lr}, v{Lr}, v{Lr} row_ror:4 row_mask:0xf bank_mask:0xf")
    e(f"v_add_f32_dpp v{Lr}, v{Lr}, v{Lr} row_ror:8 row_mask:0xf bank_mask:0xf")
    e(f"v_mov_b32 v{T}, v{Lr}")
    e(f"v_permlane16_swap_b32 v{Lr}, v{T}")
    e(f"v_add_f32 v{Lr}, v{Lr}, v{T}")
    e(f"v_mov_b32 v{T}, v{Lr}")
    e(f"v_permlane32_swap_b32 v{Lr}, v{T}")
    e(f"v_add_f32 v{M+1}, v{Lr}, v{T}")
    assert M % 2 == 0
    e(f"""
v_and_b32 v4, 15, v0
v_lshrrev_b32 v5, 4, v0
v_lshl_add_u32 v4, v4, 2, v5
v_lshlrev_b32 v4, 3, v4
s_lshl_b32 s44, s43, 9
v_add_u32 v4, s44, v4
s_lshl_b32 s44, s43, 3
v_mov_b32 v5, s44
ds_write_b64 v5, v[{M}:{M+1}] offset:{L_ML}
""")
    stamp(5)
    def pv(base, i, acc, plo, phi, bc):
        for k in range(4):
            e(f"v_dot2c_f32_bf16_dpp v{acc+2*k}, v{plo}, v{base+4*i+k} row_newbcast:{bc} row_mask:0xf bank_mask:0xf")
            e(f"v_dot2c_f32_bf16_dpp v{acc+2*k+1}, v{phi}, v{base+4*i+k} row_newbcast:{bc} row_mask:0xf bank_mask:0xf")
    def red8(acc):
        for k in range(4): e(f"v_permlane32_swap_b32 v{acc+k}, v{acc+k+4}")
        for k in range(4): e(f"v_add_f32 v{acc+k}, v{acc+k}, v{acc+k+4}")
        for k in range(2): e(f"v_permlane16_swap_b32 v{acc+k}, v{acc+k+2}")
        for k in range(2): e(f"v_add_f32 v{acc+k}, v{acc+k}, v{acc+k+2}")
    for i in range(16):
        e(f"s_waitcnt vmcnt({15-i})")
        pv(VB, i, ACC, PL + (i & 3), PH + (i & 3), 4 * (i >> 2))
    stamp(6)
    red8(ACC)
    e(f"ds_write_b64 v4, v[{ACC}:{ACC+1}] offset:{L_O}")
    e("s_waitcnt lgkmcnt(0)")
    stamp(7)
    e("s_barrier")
    stamp_out()
    e("s_endpgm")
    e("L_aux:")
    stamp(1)
    WQ, GU = 8, 72
    e(f"""
; ---- x loads
v_lshlrev_b32 v1, 4, v0
global_load_dwordx4 v[136:139], v1, s[4:5]
v_and_b32 v2, 15, v0
v_lshrrev_b32 v3, 4, v0
v_lshl_add_u32 v4, v2, 2, v3
s_lshl_b32 s40, s29, 7
v_lshl_add_u32 v5, v4, 1, s40
global_load_ushort v160, v5, s[4:5]
s_lshl_b32 s40, s29, 19
s_lshl_b32 s41, s28, 8
s_add_u32 s40, s40, s41
s_add_u32 s32, s10, s40
s_addc_u32 s33, s11, 0
s_and_b32 s33, s33, 0xffff
s_sub_u32 s34, {512*8192}, s40
s_mov_b32 s35, 0x20000
v_lshlrev_b32 v6, 13, v3
v_lshl_add_u32 v6, v2, 4, v6
""")
    for i in range(16):
        e(f"s_mov_b32 s41, {i*32768}")
        e(f"buffer_load_dwordx4 v[{WQ+4*i}:{WQ+4*i+3}], v6, s[32:35], s41 offen {wflags}")
    e(f"""
s_mul_i32 s50, s28, 43
s_add_u32 s51, s50, 43
s_lshr_b32 s50, s50, 3
s_lshr_b32 s51, s51, 3
s_sub_u32 s51, s51, s50
s_sub_u32 s40, s51, 1
v_and_b32 v7, 7, v0
v_min_u32 v7, s40, v7
v_add_u32 v7, s50, v7
v_lshlrev_b32 v7, 4, v7
s_lshl_b32 s41, s29, 6
v_add_u32 v161, s41, v3
s_movk_i32 s41, 2752
v_mul_lo_u32 v161, v161, s41
v_add_u32 v7, v7, v161
v_and_b32 v161, 8, v0
v_cmp_eq_u32 vcc, 0, v161
v_mov_b32 v162, s16
v_mov_b32 v163, s17
v_mov_b32 v164, s18
v_mov_b32 v165, s19
v_cndmask_b32 v162, v164, v162, vcc
v_cndmask_b32 v163, v165, v163, vcc
v_add_co_u32 v162, vcc, v162, v7
v_addc_co_u32 v163, vcc, 0, v163, vcc
s_mov_b32 s40, {4*2752}
s_mov_b32 s41, 0
""")
    for i in range(16):
        e(f"global_load_dwordx4 v[{GU+4*i}:{GU+4*i+3}], v[162:163], off {wflags}")
        if i < 15: e("v_lshl_add_u64 v[162:163], v[162:163], 0, s[40:41]")
    e(f"""
s_lshl_b32 s52, s28, 3
s_add_u32 s52, s52, s29          ; r = h*8+s
v_mov_b32 v164, -1
v_mov_b32 v165, -1
s_lshl_b32 s40, s52, 8
s_add_u32 s40, s40, {X2}
v_lshl_add_u32 v166, v0, 2, s40
global_store_dword v166, v164, s[26:27] sc1
s_lshl_b32 s40, s28, 7
s_lshl_b32 s41, s29, 3
s_add_u32 s40, s40, s41
s_add_u32 s53, s40, {ML}
v_mov_b32 v167, s53
global_store_dwordx2 v167, v[164:165], s[26:27] sc1
s_lshl_b32 s40, s29, 13
s_lshl_b32 s41, s28, 6
s_add_u32 s40, s40, s41
s_add_u32 s40, s40, {YY}
v_lshlrev_b32 v161, 11, v3
v_lshl_add_u32 v161, v2, 2, v161
v_add_u32 v161, s40, v161
global_store_dword v161, v164, s[26:27] sc1
v_add_u32 v7, {ZZ-YY}, v161
global_store_dword v7, v164, s[26:27] sc1
""")
    QA, GA = 140, 148
    for i in range(16): e(f"v_mov_b32 v{QA+i}, 0")
    e("s_mov_b32 s48, 0xffff0000")
    e("s_waitcnt vmcnt(36)")
    def wsum(r, t):
        e(f"v_add_f32_dpp v{r}, v{r}, v{r} quad_perm:[1,0,3,2] row_mask:0xf bank_mask:0xf")
        e(f"v_add_f32_dpp v{r}, v{r}, v{r} quad_perm:[2,3,0,1] row_mask:0xf bank_mask:0xf")
        e(f"v_add_f32_dpp v{r}, v{r}, v{r} row_ror:4 row_mask:0xf bank_mask:0xf")
        e(f"v_add_f32_dpp v{r}, v{r}, v{r} row_ror:8 row_mask:0xf bank_mask:0xf")
        e(f"v_mov_b32 v{t}, v{r}")
        e(f"v_permlane16_swap_b32 v{r}, v{t}")
        e(f"v_add_f32 v{r}, v{r}, v{t}")
        e(f"v_mov_b32 v{t}, v{r}")
        e(f"v_permlane32_swap_b32 v{r}, v{t}")
        e(f"v_add_f32 v{r}, v{r}, v{t}")
    for k in range(4): e(f"v_and_b32 v{156+k}, s48, v{136+k}")
    for k in range(4): e(f"v_lshlrev_b32 v{136+k}, 16, v{136+k}")
    e("""
v_add_f32 v4, v136, v156
v_add_f32 v5, v137, v157
v_add_f32 v6, v138, v158
v_add_f32 v7, v139, v159
v_add_f32 v4, v4, v5
v_add_f32 v6, v6, v7
v_add_f32 v4, v4, v6
""")
    wsum(4, 5)
    e(f"v_mul_f32 v4, {f2u(1/512):#x}, v4")
    for k in range(4): e(f"v_sub_f32 v{136+k}, v{136+k}, v4")
    for k in range(4): e(f"v_sub_f32 v{156+k}, v{156+k}, v4")
    e("v_mul_f32 v6, v136, v136\nv_mul_f32 v7, v156, v156")
    for k in range(1, 4): e(f"v_fmac_f32 v6, v{136+k}, v{136+k}\nv_fmac_f32 v7, v{156+k}, v{156+k}")
    e("v_add_f32 v6, v6, v7")
    wsum(6, 5)
    e(f"""
v_mul_f32 v6, {f2u(1/512):#x}, v6
v_cvt_pk_bf16_f32 v5, v4, v6
v_lshlrev_b32 v4, 16, v5           ; bf16(mean)
v_and_b32 v6, s48, v5              ; bf16(var)
v_add_f32 v6, {f2u(1e-5):#x}, v6
v_cvt_pk_bf16_f32 v6, v6, v6
v_and_b32 v6, s48, v6
v_sqrt_f32 v6, v6
v_lshlrev_b32 v160, 16, v160
v_sub_f32 v160, v160, v4
v_cvt_pk_bf16_f32 v6, v6, v160
v_and_b32 v160, s48, v6
v_lshlrev_b32 v6, 16, v6
v_rcp_f32 v6, v6
v_mul_f32 v160, v160, v6
v_cvt_pk_bf16_f32 v156, v160, 0
v_lshlrev_b32 v157, 16, v156
""")
    stamp(2)
    for i in range(16):
        e(f"s_waitcnt vmcnt({35-i})")
        pv(WQ, i, QA, 156, 157, i)
    for i in range(16):
        e(f"s_waitcnt vmcnt({19-i})")
        pv(GU, i, GA, 156, 157, i)
    red8(QA)
    red8(GA)
    e(f"""
v_mov_b32 v{QA+2}, v{GA}
v_mov_b32 v{QA+3}, v{GA+1}
v_lshl_add_u32 v4, v2, 2, v3
s_lshl_b32 s40, s52, 10
v_lshl_add_u32 v4, v4, 4, s40
global_store_dwordx4 v4, v[{QA}:{QA+3}], s[26:27] offset:{X1} sc1
s_waitcnt vmcnt(0)
v_mov_b32 v4, s52
v_mov_b32 v5, 1
s_mov_b64 exec, 1
global_store_byte v4, v5, s[24:25] sc1
s_mov_b64 exec, -1
""")
    stamp(3)
    e(f"""
s_lshl_b32 s40, s28, 3
v_mov_b32 v4, s40
s_mov_b32 s45, {SPIN}
s_mov_b32 s46, 0x01010101
L_f1:
global_load_dwordx2 v[6:7], v4, s[24:25] sc1
s_waitcnt vmcnt(0)
v_and_b32 v6, v6, v7
v_readfirstlane_b32 s47, v6
s_cmp_eq_u32 s47, s46
s_cbranch_scc1 L_f1ok
s_sub_u32 s45, s45, 1
s_cbranch_scc0 L_f1
L_f1ok:
s_lshl_b32 s40, s28, 13
v_lshl_add_u32 v4, v0, 4, s40
v_add_u32 v5, 4096, v4
""")
    stamp(4)
    for p in range(8):
        e(f"global_load_dwordx4 v[{8+4*p}:{11+4*p}], v{4+(p>>2)}, s[26:27] offset:{X1+(p&3)*1024} sc1")
    e(f"""
v_mov_b32 v140, 0
v_mov_b32 v141, 0
v_mov_b32 v142, 0
v_mov_b32 v143, 0
ds_write_b128 v1, v[140:143] offset:{L_WD+5*1024}
ds_write_b128 v1, v[140:143] offset:{L_WD+6*1024}
ds_write_b128 v1, v[140:143] offset:{L_WD+7*1024}
s_lshl_b32 s40, s50, 13
s_lshl_b32 s41, s29, 7
s_add_u32 s40, s40, s41
s_add_u32 s32, s20, s40
s_addc_u32 s33, s21, 0
s_and_b32 s33, s33, 0xffff
s_sub_u32 s34, {1376*1024}, s40
s_lshl_b32 s40, s28, 17
s_add_u32 s40, s40, s41
s_add_u32 s36, s12, s40
s_addc_u32 s37, s13, 0
s_and_b32 s37, s37, 0xffff
s_sub_u32 s38, {4096*1024}, s40
s_mov_b32 s39, 0x20000
v_lshrrev_b32 v6, 3, v0
v_and_b32 v7, 7, v0
v_lshlrev_b32 v6, 10, v6
v_lshl_add_u32 v6, v7, 4, v6
s_waitcnt lgkmcnt(0)
""")
    for i in range(5):
        e(f"s_mov_b32 m0, {L_WD+i*1024}\ns_mov_b32 s41, {i*8192}")
        e(f"buffer_load_dwordx4 v6, s[32:35], s41 offen {wflags} lds")
    e(f"""
s_cmp_eq_u32 s51, 6
s_cselect_b32 s40, 0, {0x7ff00000}
v_add_u32 v7, s40, v6
s_mov_b32 m0, {L_WD+5*1024}
s_mov_b32 s41, {5*8192}
buffer_load_dwordx4 v7, s[32:35], s41 offen {wflags} lds
""")
    for i in range(16):
        e(f"s_mov_b32 m0, {L_WO+i*1024}\ns_mov_b32 s41, {i*8192}")
        e(f"buffer_load_dwordx4 v6, s[36:39], s41 offen {wflags} lds")
    for p in range(1, 8):
        e(f"s_waitcnt vmcnt({22+7-p})")
        for k in range(4): e(f"v_add_f32 v{8+k}, v{8+k}, v{8+4*p+k}")
    e(f"""
v_cvt_pk_bf16_f32 v12, v8, v9
v_lshlrev_b32 v4, 2, v0
ds_write_b32 v4, v12 offset:{L_Q}
v_mov_b32 v5, 1
v_mov_b32 v7, {L_FLAG}
ds_write_b32 v7, v5
""")
    stamp(5)
    c1 = -2.0 * 0.7978845608028654 * LOG2E
    e(f"""
v_cvt_pk_bf16_f32 v12, v10, v11
v_mov_b32 v13, v12
v_permlane32_swap_b32 v12, v13
v_lshlrev_b32 v14, 16, v12
v_and_b32 v15, s48, v12
s_mov_b32 s40, {f2u(0.044715):#x}
s_mov_b32 s41, {f2u(c1):#x}
v_mul_f32 v16, v14, v14
v_mul_f32 v17, v15, v15
v_mul_f32 v16, v16, v14
v_mul_f32 v17, v17, v15
v_fma_f32 v16, v16, s40, v14
v_fma_f32 v17, v17, s40, v15
v_mul_f32 v16, s41, v16
v_mul_f32 v17, s41, v17
v_exp_f32 v16, v16
v_exp_f32 v17, v17
v_add_f32 v16, 1.0, v16
v_add_f32 v17, 1.0, v17
v_rcp_f32 v16, v16
v_rcp_f32 v17, v17
v_mul_f32 v14, v14, v16
v_mul_f32 v15, v15, v17
v_cvt_pk_bf16_f32 v14, v14, v15
v_lshlrev_b32 v16, 16, v13
v_and_b32 v17, s48, v13
v_and_b32 v15, s48, v14
v_lshlrev_b32 v14, 16, v14
v_mul_f32 v14, v14, v16
v_mul_f32 v15, v15, v17
v_cvt_pk_bf16_f32 v14, v14, v15
s_lshl_b32 s40, s51, 2
v_cmp_gt_u32 vcc, s40, v0
v_cndmask_b32 v14, 0, v14, vcc
s_mov_b32 exec_hi, 0
ds_write_b32 v4, v14 offset:{L_AH}
s_mov_b64 exec, -1
v_lshlrev_b32 v5, 4, v3
ds_read_b128 v[16:19], v5 offset:{L_AH}
ds_read_b128 v[20:23], v5 offset:{L_AH+64}
v_lshlrev_b32 v158, 10, v3
v_lshrrev_b32 v5, 2, v2
v_lshl_add_u32 v158, v5, 7, v158
v_and_b32 v5, 3, v0
v_lshl_add_u32 v158, v5, 3, v158
s_waitcnt vmcnt(16)
""")
    BD = 72
    for t in range(2):
        for tile in range(4):
            for half in range(2):
                r = BD + (t * 4 + tile) * 4 + half * 2
                e(f"ds_read_b64_tr_b16 v[{r}:{r+1}], v158 offset:{L_WD + t*4096 + half*512 + tile*32}")
    e("s_waitcnt lgkmcnt(0)")
    ZD = 24
    for t in range(2):
        for tile in range(4):
            r = BD + (t * 4 + tile) * 4
            c = "0" if t == 0 else f"v[{ZD+4*tile}:{ZD+4*tile+3}]"
            e(f"v_mfma_f32_16x16x32_bf16 v[{ZD+4*tile}:{ZD+4*tile+3}], v[{16+4*t}:{19+4*t}], v[{r}:{r+3}], {c}")
    for tile in range(1, 4):
        e(f"v_mov_b32_dpp v{ZD}, v{ZD+4*tile} quad_perm:[0,1,2,3] row_mask:{1<<tile:#x} bank_mask:0xf")
    e(f"""
v_min_u32 v{ZD}, -2, v{ZD}
v_add_u32 v7, {ZZ-YY}, v161
global_store_dword v7, v{ZD}, s[26:27] sc1
s_waitcnt vmcnt(1)
""")
    BO = 8
    for t in range(4):
        for tile in range(4):
            for half in range(2):
                r = BO + (t * 4 + tile) * 4 + half * 2
                e(f"ds_read_b64_tr_b16 v[{r}:{r+1}], v158 offset:{L_WO + t*4096 + half*512 + tile*32}")
    stamp(6)
    def fin_reduce(a):
        for k in range(4): e(f"v_add_f32 v{a+k}, v{a+k}, v{a+4+k}")
        e(f"v_permlane32_swap_b32 v{a}, v{a+2}")
        e(f"v_permlane32_swap_b32 v{a+1}, v{a+3}")
        e(f"v_add_f32 v{a}, v{a}, v{a+2}")
        e(f"v_add_f32 v{a+1}, v{a+1}, v{a+3}")
        e(f"v_permlane16_swap_b32 v{a}, v{a+1}")
        e(f"v_add_f32 v{a}, v{a}, v{a+1}")
        e(f"v_add_f32_dpp v{a}, v{a}, v{a} row_ror:4 row_mask:0xf bank_mask:0xf")
        e(f"v_add_f32_dpp v{a}, v{a}, v{a} row_ror:8 row_mask:0xf bank_mask:0xf")
    def poll2(label, addr, a, off):
        e(f"""
s_mov_b32 s45, {SPIN}
{label}:
global_load_dwordx4 v[{a}:{a+3}], v{addr}, s[26:27] sc1
global_load_dwordx4 v[{a+4}:{a+7}], v{addr}, s[26:27] offset:1024 sc1
s_waitcnt vmcnt(0)
v_max3_u32 v{a+8}, v{a}, v{a+1}, v{a+2}
v_max3_u32 v{a+9}, v{a+3}, v{a+4}, v{a+5}
v_max3_u32 v{a+8}, v{a+8}, v{a+6}, v{a+7}
v_max_u32 v{a+8}, v{a+8}, v{a+9}
v_cmp_eq_u32 vcc, -1, v{a+8}
s_cbranch_vccz {label}_ok
s_sub_u32 s45, s45, 1
s_cbranch_scc0 {label}
{label}_ok:
""")
    e(f"""
s_cmp_lt_u32 s28, 4
s_cbranch_scc0 L_nored1
s_mov_b32 s45, {SPIN}
v_lshlrev_b32 v4, 2, v0
L_f2:
global_load_dword v5, v4, s[24:25] sc1
s_waitcnt vmcnt(0)
v_cmp_ne_u32 vcc, s46, v5
s_cbranch_vccz L_f2ok
s_sleep 4
s_sub_u32 s45, s45, 1
s_cbranch_scc0 L_f2
L_f2ok:
s_lshl_b32 s40, s29, 6
s_lshl_b32 s41, s28, 4
s_add_u32 s40, s40, s41
v_and_b32 v4, 3, v0
v_lshl_add_u32 v4, v4, 2, v3
v_add_u32 v4, s40, v4
v_lshlrev_b32 v159, 1, v4
global_load_ushort v104, v159, s[4:5]
s_lshl_b32 s40, s29, 13
s_lshl_b32 s41, s28, 11
s_add_u32 s40, s40, s41
s_add_u32 s40, s40, {YY}
v_lshl_add_u32 v105, v0, 4, s40
v_add_u32 v106, {ZZ-YY}, v105
""")
    poll2("L_pz", 106, 108, 0)
    fin_reduce(108)
    e(f"""
v_cvt_pk_bf16_f32 v107, v108, v108
v_and_b32 v107, s48, v107
v_lshlrev_b32 v104, 16, v104       ; x as f32
L_nored1:
v_lshlrev_b32 v4, 3, v0
v_mov_b32 v5, 0
s_mov_b32 s49, {f2u(LOG2E):#x}
v_and_b32 v6, 7, v0
v_lshlrev_b32 v6, 8, v6
v_lshl_add_u32 v6, v3, 4, v6
s_lshl_b32 s40, s28, 11
s_add_u32 s40, s40, {X2}
v_add_u32 v6, s40, v6
v_lshl_add_u32 v7, v3, 2, v2
v_and_b32 v7, 7, v7
s_lshl_b32 s40, s28, 7
s_add_u32 s40, s40, {ML}
v_lshl_add_u32 v7, v7, 3, s40
s_waitcnt lgkmcnt(0)
""")
    stamp(7)
    e("s_barrier")
    stamp(8)
    OB = 72; MB = 120
    for k in range(4): e(f"ds_read_b128 v[{MB+4*k}:{MB+4*k+3}], v5 offset:{L_ML+16*k}")
    for w in range(8): e(f"ds_read_b64 v[{OB+2*w}:{OB+2*w+1}], v4 offset:{L_O+512*w}")
    e("s_waitcnt lgkmcnt(8)")
    ms = [MB + 2 * w for w in range(8)]; ls = [MB + 2 * w + 1 for w in range(8)]
    e(f"v_max3_f32 v88, v{ms[0]}, v{ms[1]}, v{ms[2]}")
    e(f"v_max3_f32 v89, v{ms[3]}, v{ms[4]}, v{ms[5]}")
    e(f"v_max3_f32 v88, v88, v{ms[6]}, v{ms[7]}")
    e(f"v_max_f32 v88, v88, v89")
    for w in range(8): e(f"v_sub_f32 v{ms[w]}, v{ms[w]}, v88")
    for w in range(8): e(f"v_mul_f32 v{ms[w]}, s49, v{ms[w]}")
    for w in range(8): e(f"v_exp_f32 v{ms[w]}, v{ms[w]}")
    e("s_waitcnt lgkmcnt(0)")
    e(f"v_mul_f32 v90, v{ms[0]}, v{OB}\nv_mul_f32 v91, v{ms[0]}, v{OB+1}\nv_mul_f32 v92, v{ms[1]}, v{OB+2}\nv_mul_f32 v93, v{ms[1]}, v{OB+3}")
    for w in range(2, 8, 2):
        e(f"v_fmac_f32 v90, v{ms[w]}, v{OB+2*w}\nv_fmac_f32 v91, v{ms[w]}, v{OB+2*w+1}")
        e(f"v_fmac_f32 v92, v{ms[w+1]}, v{OB+2*w+2}\nv_fmac_f32 v93, v{ms[w+1]}, v{OB+2*w+3}")
    e("v_add_f32 v90, v90, v92\nv_add_f32 v91, v91, v93")
    e("v_cvt_pk_bf16_f32 v90, v90, v91\nv_min_u32 v90, -2, v90")
    e("global_store_dword v166, v90, s[26:27] sc1")
    e(f"v_mul_f32 v89, v{ms[0]}, v{ls[0]}\nv_mul_f32 v92, v{ms[1]}, v{ls[1]}")
    for w in range(2, 8, 2):
        e(f"v_fmac_f32 v89, v{ms[w]}, v{ls[w]}\nv_fmac_f32 v92, v{ms[w+1]}, v{ls[w+1]}")
    e("v_add_f32 v89, v89, v92\nv_min_u32 v88, -2, v88\nv_min_u32 v89, -2, v89")
    e("s_mov_b64 exec, 1\nglobal_store_dwordx2 v167, v[88:89], s[26:27] sc1\ns_mov_b64 exec, -1")
    stamp(9)
    AO = 72
    e(f"""
s_mov_b32 s45, {SPIN}
L_p1:
global_load_dwordx2 v[88:89], v7, s[26:27] sc1
""")
    for t in range(4): e(f"global_load_dwordx4 v[{AO+4*t}:{AO+4*t+3}], v6, s[26:27] offset:{64*t} sc1")
    e("s_waitcnt vmcnt(0)")
    e(f"v_max3_u32 v90, v88, v89, v{AO}")
    e(f"v_max3_u32 v91, v{AO+1}, v{AO+2}, v{AO+3}")
    for k in range(4, 16, 4):
        e(f"v_max3_u32 v90, v90, v{AO+k}, v{AO+k+1}")
        e(f"v_max3_u32 v91, v91, v{AO+k+2}, v{AO+k+3}")
    e(f"""
v_max_u32 v90, v90, v91
v_cmp_eq_u32 vcc, -1, v90
s_cbranch_vccz L_p1ok
s_sub_u32 s45, s45, 1
s_cbranch_scc0 L_p1
L_p1ok:
""")
    stamp(10)
    YD = 120
    for t in range(4):
        for tile in range(4):
            r = BO + (t * 4 + tile) * 4
            c = "0" if t == 0 else f"v[{YD+4*tile}:{YD+4*tile+3}]"
            e(f"v_mfma_f32_16x16x32_bf16 v[{YD+4*tile}:{YD+4*tile+3}], v[{AO+4*t}:{AO+4*t+3}], v[{r}:{r+3}], {c}")
        if t == 0:
            e("v_max_f32_dpp v90, v88, v88 row_ror:4 row_mask:0xf bank_mask:0xf")
            e("v_max_f32_dpp v90, v90, v90 row_ror:2 row_mask:0xf bank_mask:0xf")
            e("v_max_f32_dpp v90, v90, v90 row_ror:1 row_mask:0xf bank_mask:0xf")
            e("v_sub_f32 v88, v88, v90\nv_mul_f32 v88, s49, v88\nv_exp_f32 v88, v88")
        if t == 1:
            e("v_mul_f32 v89, v88, v89")
            e("v_add_f32_dpp v89, v89, v89 row_ror:4 row_mask:0xf bank_mask:0xf")
            e("v_add_f32_dpp v89, v89, v89 row_ror:2 row_mask:0xf bank_mask:0xf")
            e("v_add_f32_dpp v89, v89, v89 row_ror:1 row_mask:0xf bank_mask:0xf")
        if t == 2:
            e("v_rcp_f32 v89, v89\nv_mul_f32 v88, v88, v89")
    for tile in range(4):
        e(f"v_mul_f32_dpp v{92+tile}, v88, v{YD+4*tile} row_newbcast:0 row_mask:0xf bank_mask:0xf")
    for r in range(1, 4):
        for tile in range(4):
            e(f"v_fmac_f32_dpp v{92+tile}, v88, v{YD+4*tile+r} row_newbcast:{r} row_mask:0xf bank_mask:0xf")
    e("""
v_permlane16_swap_b32 v92, v93
v_permlane16_swap_b32 v94, v95
v_add_f32 v92, v92, v93
v_add_f32_dpp v92, v94, v95 quad_perm:[0,1,2,3] row_mask:0xc bank_mask:0xf
v_min_u32 v92, -2, v92
global_store_dword v161, v92, s[26:27] sc1
""")
    e("s_cmp_lt_u32 s28, 4\ns_cbranch_scc0 L_fin")
    poll2("L_py", 105, 108, 0)
    fin_reduce(108)
    e(f"""
v_cvt_pk_bf16_f32 v108, v108, v108
v_and_b32 v108, s48, v108
v_add_f32 v108, v104, v108
v_cvt_pk_bf16_f32 v108, v108, v108
v_and_b32 v108, s48, v108
v_add_f32 v108, v108, v107
v_cvt_pk_bf16_f32 v108, v108, v108
s_mov_b32 s40, 0x000f000f
s_mov_b32 s41, 0x000f000f
s_mov_b64 exec, s[40:41]
global_store_short v159, v108, s[22:23]
s_mov_b64 exec, -1
L_fin:
""")
    stamp(11)
    stamp_out()
    e("L_end:\ns_endpgm")
    hdr = open("cdna_kernels/" + NAME + ".s.ref").read().split("; Override launch")[0]
    return hdr + f"""; @launch grid=(256,1,1) block=(576,1,1) lds={L_SIZE}
.amdgcn_target "amdgcn-amd-amdhsa--gfx950"
.text
.globl {NAME}_kernel
.p2align 8
.type {NAME}_kernel,@function
{NAME}_kernel:
{e.text()}
.section .rodata,"a"
.p2align 6
.amdhsa_kernel {NAME}_kernel
  .amdhsa_next_free_vgpr 168
  .amdhsa_next_free_sgpr 96
  .amdhsa_accum_offset 168
  .amdhsa_group_segment_fixed_size 0
  .amdhsa_kernarg_size 96
  .amdhsa_user_sgpr_count 2
  .amdhsa_user_sgpr_kernarg_segment_ptr 1
  .amdhsa_system_sgpr_workgroup_id_x 1
.end_amdhsa_kernel
"""
if __name__ == "__main__":
    open("k1.s", "w").write(gen())
    open("k1_st.s", "w").write(gen(stamps=True))
```

```python
import sys, struct
from emit import Emit
NAME = "parallel_sum__sliding_block_cached__geglu_ffn__decode"
def f2u(x): return struct.unpack("<I", struct.pack("<f", x))[0]
LOG2E = 1.4426950408889634
X2 = 0x40000; ML = 0x50000; YY = 0x60000; ZZ = 0x70000; X1 = 0x80000
L_WO = 0; L_WD = 16384; L_O = 24576; L_ML = 28672; L_Q = 28736; L_AH = 28992; L_FLAG = 29120; L_SIZE = 29184
SPIN = 1 << 17
DPPF = "row_mask:0xf bank_mask:0xf"

def gen(stamps=False, hmul=0x3779B1, hshift=13, hmask=127, chunk=1, kvflags="nt", wflags="nt",
        depth=3, qslot=24, woslot=30, wowave=5):
    e = Emit()
    NST = 12
    def stamp(i):
        if stamps: e(f"s_memrealtime s[{60+2*i}:{61+2*i}]")
    def stamp_out():
        if not stamps: return
        e("s_waitcnt lgkmcnt(0)")
        e(f"s_mul_i32 s58, s2, 9\ns_add_u32 s58, s58, s30\ns_mul_i32 s58, s58, {NST*8}")
        e("s_add_u32 s56, s26, 0x20000000\ns_addc_u32 s57, s27, 0")
        e("s_mov_b64 exec, 1\nv_mov_b32 v0, s58")
        for i in range(NST):
            e(f"v_mov_b32 v2, s{60+2*i}\nv_mov_b32 v3, s{61+2*i}\nglobal_store_dwordx2 v0, v[2:3], s[56:57] offset:{8*i}\ns_nop 1")
    def pv(base, i, acc, plo, phi, bc):
        o = []
        for k in range(4):
            o.append(f"v_dot2c_f32_bf16_dpp v{acc+2*k}, v{plo}, v{base+4*i+k} row_newbcast:{bc} {DPPF}")
            o.append(f"v_dot2c_f32_bf16_dpp v{acc+2*k+1}, v{phi}, v{base+4*i+k} row_newbcast:{bc} {DPPF}")
        return "\n".join(o)
    def red8(acc):
        for k in range(4): e(f"v_permlane32_swap_b32 v{acc+k}, v{acc+k+4}")
        for k in range(4): e(f"v_add_f32 v{acc+k}, v{acc+k}, v{acc+k+4}")
        for k in range(2): e(f"v_permlane16_swap_b32 v{acc+k}, v{acc+k+2}")
        for k in range(2): e(f"v_add_f32 v{acc+k}, v{acc+k}, v{acc+k+2}")
    if stamps:
        for i in range(NST): e(f"s_mov_b64 s[{60+2*i}:{61+2*i}], 0")
    stamp(0)
    e(f"""
s_cmp_ge_u32 s2, 256
s_cbranch_scc1 L_end
s_load_dwordx16 s[4:19], s[0:1], 0
s_load_dwordx8 s[20:27], s[0:1], 64
s_memrealtime s[54:55]
v_lshrrev_b32 v1, 6, v0
v_and_b32 v0, 63, v0
v_mov_b32 v2, 0
v_mov_b32 v3, 0
v_mov_b32 v4, {L_FLAG}
v_readfirstlane_b32 s30, v1
ds_write_b64 v4, v[2:3]
s_and_b32 s28, s2, 7
s_lshr_b32 s29, s2, 6
s_lshl_b32 s29, s29, 3
s_add_u32 s28, s28, s29
s_lshr_b32 s29, s2, 3
s_and_b32 s29, s29, 7
v_lshlrev_b32 v1, 4, v0
s_cmp_eq_u32 s30, 0
s_cbranch_scc1 L_aux
""")
    KB, VB = 8, 72
    R = 140; ACC = 156; Q = 136
    e(f"""
s_lshl_b32 s40, s28, 23
s_lshl_b32 s41, s29, 17
s_add_u32 s40, s40, s41
s_add_u32 s40, s40, {(32768-4096)*256}
s_mov_b32 s34, 0x20000
s_mov_b32 s35, 0x20000
s_mov_b32 s38, 0x20000
s_mov_b32 s39, 0x20000
s_mul_i32 s42, s2, {hmul}
s_lshr_b32 s42, s42, {hshift}
s_and_b32 s42, s42, {hmask}
s_sub_u32 s43, s30, 1
s_mul_i32 s44, s43, {chunk}
s_xor_b32 s42, s42, s44
s_lshl_b32 s42, s42, 10
""")
    for i in range(16): e(f"v_mov_b32 v{R+i}, 0")
    for i in range(8): e(f"v_mov_b32 v{ACC+i}, 0")
    e(f"""
v_mov_b32 v3, {L_FLAG}
v_and_b32 v6, 15, v0
v_lshrrev_b32 v5, 4, v0
v_lshl_add_u32 v4, v6, 2, v5
v_lshlrev_b32 v4, 3, v4
s_lshl_b32 s44, s43, 9
v_add_u32 v4, s44, v4
s_lshl_b32 s44, s43, 3
v_mov_b32 v5, s44
v_lshlrev_b32 v6, 4, v6
v_mov_b32 v7, 1
s_mov_b32 s47, {f2u(128 ** -0.5):#x}
s_mov_b32 s48, 0xffff0000
s_mov_b32 s49, {f2u(LOG2E):#x}
s_waitcnt lgkmcnt(0)
s_add_u32 s32, s6, s40
s_addc_u32 s33, s7, 0
s_and_b32 s33, s33, 0xffff
s_add_u32 s36, s8, s40
s_addc_u32 s37, s9, 0
s_and_b32 s37, s37, 0xffff
""")
    stamp(1)
    e("s_barrier")
    def idx(i): return ((i // chunk) * (chunk * 8) + i % chunk) * 1024
    issued = [0]
    def issue():
        n = issued[0]
        if n >= 32: return
        i = n & 15
        e(f"s_xor_b32 s41, s42, {idx(i)}")
        if n >= depth: e(f"s_waitcnt vmcnt({depth-1})")
        if n < 16: e(f"buffer_load_dwordx4 v[{KB+4*i}:{KB+4*i+3}], v1, s[32:35], s41 offen {kvflags}")
        else: e(f"buffer_load_dwordx4 v[{VB+4*i}:{VB+4*i+3}], v1, s[36:39], s41 offen {kvflags}")
        issued[0] += 1
        if n == woslot:
            e(f"s_cmp_lg_u32 s30, {wowave}\ns_cbranch_scc1 L_nosig\nds_write_b32 v3, v7 offset:4\nL_nosig:")
    def need(n):
        out = issued[0] - 1 - n
        done = issued[0] - 1 - depth if issued[0] > depth else -1
        if n > done: e(f"s_waitcnt vmcnt({out})")
    while issued[0] < qslot: issue()
    stamp(2)
    e(f"""
s_mov_b32 s45, {SPIN}
L_qwait:
ds_read_b32 v2, v3
s_waitcnt lgkmcnt(0)
v_readfirstlane_b32 s46, v2
s_cmp_lg_u32 s46, 0
s_cbranch_scc1 L_qok
s_sleep 1
s_sub_u32 s45, s45, 1
s_cbranch_scc0 L_qwait
L_qok:
ds_read_b128 v[{Q}:{Q+3}], v6 offset:{L_Q}
s_waitcnt lgkmcnt(0)
""")
    stamp(3)
    need(15)
    for i in range(0, 16, 4):
        for k in range(4):
            for j in range(4): e(f"v_dot2c_f32_bf16 v{R+i+j}, v{KB+4*(i+j)+k}, v{Q+k}")
    issue()
    for i in range(8): e(f"v_add_f32_dpp v{R+i}, v{R+i}, v{R+i} row_ror:8 row_mask:0xf bank_mask:0x3")
    for i in range(8): e(f"v_add_f32_dpp v{R+i}, v{R+i+8}, v{R+i+8} row_ror:8 row_mask:0xf bank_mask:0xc")
    for i in range(4): e(f"v_add_f32_dpp v{R+i}, v{R+i}, v{R+i} row_half_mirror row_mask:0xf bank_mask:0x5")
    for i in range(4): e(f"v_add_f32_dpp v{R+i}, v{R+i+4}, v{R+i+4} row_half_mirror row_mask:0xf bank_mask:0xa")
    for i in range(4): e(f"v_add_f32_dpp v{R+i}, v{R+i}, v{R+i} quad_perm:[1,0,3,2] {DPPF}")
    for i in range(4): e(f"v_add_f32_dpp v{R+i}, v{R+i}, v{R+i} quad_perm:[2,3,0,1] {DPPF}")
    S0 = R
    def rnd4():
        e(f"v_cvt_pk_bf16_f32 v{S0+4}, v{S0}, v{S0+1}")
        e(f"v_cvt_pk_bf16_f32 v{S0+5}, v{S0+2}, v{S0+3}")
        e(f"v_lshlrev_b32 v{S0}, 16, v{S0+4}")
        e(f"v_and_b32 v{S0+1}, s48, v{S0+4}")
        e(f"v_lshlrev_b32 v{S0+2}, 16, v{S0+5}")
        e(f"v_and_b32 v{S0+3}, s48, v{S0+5}")
    rnd4()
    for i in range(4): e(f"v_mul_f32 v{S0+i}, s47, v{S0+i}")
    rnd4()
    M = S0 + 6; T = S0 + 5
    e(f"v_max3_f32 v{M}, v{S0}, v{S0+1}, v{S0+2}")
    e(f"v_max_f32 v{M}, v{M}, v{S0+3}")
    e(f"v_max_f32_dpp v{M}, v{M}, v{M} row_ror:4 {DPPF}")
    e(f"v_max_f32_dpp v{M}, v{M}, v{M} row_ror:8 {DPPF}")
    e(f"v_mov_b32 v{T}, v{M}")
    e(f"v_permlane16_swap_b32 v{M}, v{T}")
    e(f"v_max_f32 v{M}, v{M}, v{T}")
    e(f"v_mov_b32 v{T}, v{M}")
    e(f"v_permlane32_swap_b32 v{M}, v{T}")
    e(f"v_max_f32 v{M}, v{M}, v{T}")
    for i in range(4): e(f"v_sub_f32 v{S0+i}, v{S0+i}, v{M}")
    for i in range(4): e(f"v_mul_f32 v{S0+i}, s49, v{S0+i}")
    for i in range(4): e(f"v_exp_f32 v{S0+i}, v{S0+i}")
    PL = S0 + 8; PH = S0 + 12
    for i in range(4): e(f"v_cvt_pk_bf16_f32 v{PL+i}, v{S0+i}, 0")
    for i in range(4): e(f"v_lshlrev_b32 v{PH+i}, 16, v{PL+i}")
    issue()
    Lr = S0 + 4
    e(f"v_add_f32 v{Lr}, v{S0}, v{S0+1}")
    e(f"v_add_f32 v{T}, v{S0+2}, v{S0+3}")
    e(f"v_add_f32 v{Lr}, v{Lr}, v{T}")
    e(f"v_add_f32_dpp v{Lr}, v{Lr}, v{Lr} row_ror:4 {DPPF}")
    e(f"v_add_f32_dpp v{Lr}, v{Lr}, v{Lr} row_ror:8 {DPPF}")
    e(f"v_mov_b32 v{T}, v{Lr}")
    e(f"v_permlane16_swap_b32 v{Lr}, v{T}")
    e(f"v_add_f32 v{Lr}, v{Lr}, v{T}")
    e(f"v_mov_b32 v{T}, v{Lr}")
    e(f"v_permlane32_swap_b32 v{Lr}, v{T}")
    e(f"v_add_f32 v{M+1}, v{Lr}, v{T}")
    assert M % 2 == 0
    e(f"ds_write_b64 v5, v[{M}:{M+1}] offset:{L_ML}")
    stamp(4)
    nv = 0; since = 0
    while nv < 16:
        done = issued[0] - 1 - depth
        if issued[0] < 32 and (16 + nv > done or since >= 6):
            issue(); since = 0; continue
        need(16 + nv)
        e(pv(VB, nv, ACC, PL + (nv & 3), PH + (nv & 3), 4 * (nv >> 2)))
        nv += 1; since += 1
        if nv == 13: stamp(5)
    stamp(6)
    red8(ACC)
    e(f"ds_write_b64 v4, v[{ACC}:{ACC+1}] offset:{L_O}")
    e("s_waitcnt lgkmcnt(0)")
    stamp(7)
    e("s_barrier")
    stamp_out()
    e("s_endpgm")
    e("L_aux:")
    WQ, GU = 8, 72
    e(f"""
v_and_b32 v2, 15, v0
v_lshrrev_b32 v3, 4, v0
v_lshl_add_u32 v4, v2, 2, v3
s_lshl_b32 s40, s29, 7
v_lshl_add_u32 v5, v4, 1, s40
v_lshlrev_b32 v6, 13, v3
v_lshl_add_u32 v6, v2, 4, v6
s_lshl_b32 s40, s29, 19
s_lshl_b32 s41, s28, 8
s_add_u32 s40, s40, s41
s_sub_u32 s34, {512*8192}, s40
s_mov_b32 s35, 0x20000
s_mul_i32 s50, s28, 43
s_add_u32 s51, s50, 43
s_lshr_b32 s50, s50, 3
s_lshr_b32 s51, s51, 3
s_sub_u32 s51, s51, s50
s_sub_u32 s42, s51, 1
v_and_b32 v7, 7, v0
v_min_u32 v7, s42, v7
v_add_u32 v7, s50, v7
v_lshlrev_b32 v7, 4, v7
s_lshl_b32 s41, s29, 6
v_add_u32 v161, s41, v3
s_movk_i32 s41, 2752
v_mul_lo_u32 v161, v161, s41
v_add_u32 v7, v7, v161
v_and_b32 v161, 8, v0
v_cmp_eq_u32 vcc, 0, v161
s_waitcnt lgkmcnt(0)
""")
    stamp(1)
    e(f"""
global_load_dwordx4 v[136:139], v1, s[4:5]
global_load_ushort v160, v5, s[4:5]
s_add_u32 s32, s10, s40
s_addc_u32 s33, s11, 0
s_and_b32 s33, s33, 0xffff
""")
    for i in range(16):
        e(f"s_mov_b32 s41, {i*32768}")
        e(f"buffer_load_dwordx4 v[{WQ+4*i}:{WQ+4*i+3}], v6, s[32:35], s41 offen {wflags}")
        if i == 0:
            e(f"""
v_mov_b32 v162, s16
v_mov_b32 v163, s17
v_mov_b32 v164, s18
v_mov_b32 v165, s19
v_cndmask_b32 v162, v164, v162, vcc
v_cndmask_b32 v163, v165, v163, vcc
v_add_co_u32 v162, vcc, v162, v7
v_addc_co_u32 v163, vcc, 0, v163, vcc
""")
    e(f"s_mov_b32 s40, {4*2752}\ns_mov_b32 s41, 0")
    for i in range(16):
        e(f"global_load_dwordx4 v[{GU+4*i}:{GU+4*i+3}], v[162:163], off {wflags}")
        if i < 15: e("v_lshl_add_u64 v[162:163], v[162:163], 0, s[40:41]")
    e(f"""
s_or_b32 s54, s54, 1
s_lshl_b32 s40, s28, 3
v_mov_b32 v4, s40
v_mov_b32 v162, s54
v_mov_b32 v163, 0
s_mov_b64 exec, 1
global_atomic_cmpswap v162, v4, v[162:163], s[24:25] sc0 sc1
s_mov_b64 exec, -1
s_lshl_b32 s52, s28, 3
s_add_u32 s52, s52, s29          ; r = h*8+s
v_mov_b32 v164, -1
v_mov_b32 v165, -1
s_lshl_b32 s40, s52, 8
s_add_u32 s40, s40, {X2}
v_lshl_add_u32 v166, v0, 2, s40
global_store_dword v166, v164, s[26:27] sc1
s_lshl_b32 s40, s28, 7
s_lshl_b32 s41, s29, 3
s_add_u32 s40, s40, s41
s_add_u32 s53, s40, {ML}
v_mov_b32 v167, s53
global_store_dwordx2 v167, v[164:165], s[26:27] sc1
s_lshl_b32 s40, s29, 13
s_lshl_b32 s41, s28, 6
s_add_u32 s40, s40, s41
s_add_u32 s40, s40, {YY}
v_lshlrev_b32 v161, 11, v3
v_lshl_add_u32 v161, v2, 2, v161
v_add_u32 v161, s40, v161
global_store_dword v161, v164, s[26:27] sc1
v_add_u32 v7, {ZZ-YY}, v161
global_store_dword v7, v164, s[26:27] sc1
s_barrier
""")
    QA, GA = 140, 148
    for i in range(16): e(f"v_mov_b32 v{QA+i}, 0")
    e("s_mov_b32 s48, 0xffff0000")
    e("s_waitcnt vmcnt(37)")
    def wsum(r, t):
        e(f"v_add_f32_dpp v{r}, v{r}, v{r} quad_perm:[1,0,3,2] {DPPF}")
        e(f"v_add_f32_dpp v{r}, v{r}, v{r} quad_perm:[2,3,0,1] {DPPF}")
        e(f"v_add_f32_dpp v{r}, v{r}, v{r} row_ror:4 {DPPF}")
        e(f"v_add_f32_dpp v{r}, v{r}, v{r} row_ror:8 {DPPF}")
        e(f"v_mov_b32 v{t}, v{r}")
        e(f"v_permlane16_swap_b32 v{r}, v{t}")
        e(f"v_add_f32 v{r}, v{r}, v{t}")
        e(f"v_mov_b32 v{t}, v{r}")
        e(f"v_permlane32_swap_b32 v{r}, v{t}")
        e(f"v_add_f32 v{r}, v{r}, v{t}")
    for k in range(4): e(f"v_and_b32 v{156+k}, s48, v{136+k}")
    for k in range(4): e(f"v_lshlrev_b32 v{136+k}, 16, v{136+k}")
    e("""
v_add_f32 v4, v136, v156
v_add_f32 v5, v137, v157
v_add_f32 v6, v138, v158
v_add_f32 v7, v139, v159
v_add_f32 v4, v4, v5
v_add_f32 v6, v6, v7
v_add_f32 v4, v4, v6
""")
    wsum(4, 5)
    e(f"v_mul_f32 v4, {f2u(1/512):#x}, v4")
    for k in range(4): e(f"v_sub_f32 v{136+k}, v{136+k}, v4")
    for k in range(4): e(f"v_sub_f32 v{156+k}, v{156+k}, v4")
    e("v_mul_f32 v6, v136, v136\nv_mul_f32 v7, v156, v156")
    for k in range(1, 4): e(f"v_fmac_f32 v6, v{136+k}, v{136+k}\nv_fmac_f32 v7, v{156+k}, v{156+k}")
    e("v_add_f32 v6, v6, v7")
    wsum(6, 5)
    e(f"""
v_mul_f32 v6, {f2u(1/512):#x}, v6
v_cvt_pk_bf16_f32 v5, v4, v6
v_lshlrev_b32 v4, 16, v5           ; bf16(mean)
v_and_b32 v6, s48, v5              ; bf16(var)
v_add_f32 v6, {f2u(1e-5):#x}, v6
v_cvt_pk_bf16_f32 v6, v6, v6
v_and_b32 v6, s48, v6
v_sqrt_f32 v6, v6
v_lshlrev_b32 v160, 16, v160
v_sub_f32 v160, v160, v4
v_cvt_pk_bf16_f32 v6, v6, v160
v_and_b32 v160, s48, v6
v_lshlrev_b32 v6, 16, v6
v_rcp_f32 v6, v6
v_mul_f32 v160, v160, v6
v_cvt_pk_bf16_f32 v156, v160, 0
v_lshlrev_b32 v157, 16, v156
""")
    stamp(2)
    for i in range(16):
        e(f"s_waitcnt vmcnt({36-i})")
        e(pv(WQ, i, QA, 156, 157, i))
    for i in range(16):
        e(f"s_waitcnt vmcnt({20-i})")
        e(pv(GU, i, GA, 156, 157, i))
    red8(QA)
    red8(GA)
    e(f"""
s_waitcnt vmcnt(0)
v_readfirstlane_b32 s55, v162
s_cmp_eq_u32 s55, 0
s_cselect_b32 s55, s54, s55        ; nonce
v_mov_b32 v{QA+2}, v{QA+1}
v_mov_b32 v{GA+2}, v{GA+1}
v_mov_b32 v{QA+1}, s55
v_mov_b32 v{QA+3}, s55
v_mov_b32 v{GA+1}, s55
v_mov_b32 v{GA+3}, s55
v_lshl_add_u32 v4, v2, 2, v3
s_lshl_b32 s40, s52, 11
s_add_u32 s40, s40, {X1}
v_lshl_add_u32 v4, v4, 4, s40
global_store_dwordx4 v4, v[{QA}:{QA+3}], s[26:27] sc1
global_store_dwordx4 v4, v[{GA}:{GA+3}], s[26:27] offset:1024 sc1
s_lshl_b32 s40, s29, 5
v_mov_b32 v4, s40
v_mov_b32 v5, 1
s_mov_b64 exec, 1
global_atomic_add v4, v5, s[24:25] offset:4 sc1
s_mov_b64 exec, -1
""")
    stamp(3)
    def gather(label, part):
        e(f"s_mov_b32 s45, {SPIN}\n{label}:")
        for p in range(8):
            e(f"global_load_dwordx4 v[{8+4*p}:{11+4*p}], v{40+(p>>1)}, s[26:27] offset:{(p&1)*2048+part*1024} sc1")
        e("s_waitcnt vmcnt(0)")
        e("v_xor_b32 v44, s55, v9\nv_xor_b32 v45, s55, v11")
        for p in range(1, 8):
            e(f"v_xor_b32 v46, s55, v{9+4*p}\nv_xor_b32 v47, s55, v{11+4*p}\nv_or3_b32 v44, v44, v46, v47")
        e(f"""
v_or_b32 v44, v44, v45
v_cmp_ne_u32 vcc, 0, v44
s_cbranch_vccz {label}_ok
s_sub_u32 s45, s45, 1
s_cbranch_scc0 {label}
{label}_ok:
""")
        for p in range(1, 8):
            e(f"v_add_f32 v8, v8, v{8+4*p}\nv_add_f32 v10, v10, v{10+4*p}")
    e(f"""
s_lshl_b32 s40, s28, 14
s_add_u32 s40, s40, {X1}
v_lshl_add_u32 v40, v0, 4, s40
v_add_u32 v41, 4096, v40
v_add_u32 v42, 8192, v40
v_add_u32 v43, 12288, v40
""")
    gather("L_g1", 0)
    stamp(4)
    e(f"""
v_cvt_pk_bf16_f32 v12, v8, v10
v_lshlrev_b32 v4, 2, v0
ds_write_b32 v4, v12 offset:{L_Q}
v_mov_b32 v5, 1
v_mov_b32 v7, {L_FLAG}
ds_write_b32 v7, v5
""")
    gather("L_g2", 1)
    c1 = -2.0 * 0.7978845608028654 * LOG2E
    AH = 144
    e(f"""
v_cvt_pk_bf16_f32 v12, v8, v10
v_mov_b32 v13, v12
v_permlane32_swap_b32 v12, v13
v_lshlrev_b32 v14, 16, v12
v_and_b32 v15, s48, v12
s_mov_b32 s40, {f2u(0.044715):#x}
s_mov_b32 s41, {f2u(c1):#x}
v_mul_f32 v16, v14, v14
v_mul_f32 v17, v15, v15
v_mul_f32 v16, v16, v14
v_mul_f32 v17, v17, v15
v_fma_f32 v16, v16, s40, v14
v_fma_f32 v17, v17, s40, v15
v_mul_f32 v16, s41, v16
v_mul_f32 v17, s41, v17
v_exp_f32 v16, v16
v_exp_f32 v17, v17
v_add_f32 v16, 1.0, v16
v_add_f32 v17, 1.0, v17
v_rcp_f32 v16, v16
v_rcp_f32 v17, v17
v_mul_f32 v14, v14, v16
v_mul_f32 v15, v15, v17
v_cvt_pk_bf16_f32 v14, v14, v15
v_lshlrev_b32 v16, 16, v13
v_and_b32 v17, s48, v13
v_and_b32 v15, s48, v14
v_lshlrev_b32 v14, 16, v14
v_mul_f32 v14, v14, v16
v_mul_f32 v15, v15, v17
v_cvt_pk_bf16_f32 v14, v14, v15
s_lshl_b32 s40, s51, 2
v_cmp_gt_u32 vcc, s40, v0
v_cndmask_b32 v14, 0, v14, vcc
s_mov_b32 exec_hi, 0
ds_write_b32 v4, v14 offset:{L_AH}
s_mov_b64 exec, -1
v_lshlrev_b32 v5, 4, v3
ds_read_b128 v[{AH}:{AH+3}], v5 offset:{L_AH}
ds_read_b128 v[{AH+4}:{AH+7}], v5 offset:{L_AH+64}
v_mov_b32 v140, 0
v_mov_b32 v141, 0
v_mov_b32 v142, 0
v_mov_b32 v143, 0
ds_write_b128 v1, v[140:143] offset:{L_WD+6*1024}
ds_write_b128 v1, v[140:143] offset:{L_WD+7*1024}
v_lshlrev_b32 v158, 10, v3
v_lshrrev_b32 v5, 2, v2
v_lshl_add_u32 v158, v5, 7, v158
v_and_b32 v5, 3, v0
v_lshl_add_u32 v158, v5, 3, v158
s_lshl_b32 s40, s50, 13
s_lshl_b32 s41, s29, 7
s_add_u32 s40, s40, s41
s_add_u32 s32, s20, s40
s_addc_u32 s33, s21, 0
s_and_b32 s33, s33, 0xffff
s_sub_u32 s34, {1376*1024}, s40
s_lshl_b32 s40, s28, 17
s_add_u32 s40, s40, s41
s_add_u32 s36, s12, s40
s_addc_u32 s37, s13, 0
s_and_b32 s37, s37, 0xffff
s_sub_u32 s38, {4096*1024}, s40
s_mov_b32 s39, 0x20000
v_lshrrev_b32 v152, 3, v0
v_and_b32 v5, 7, v0
v_lshlrev_b32 v152, 10, v152
v_lshl_add_u32 v152, v5, 4, v152
s_cmp_eq_u32 s51, 6
s_cselect_b32 s40, 0, {0x7ff00000}
v_add_u32 v153, s40, v152
""")
    stamp(5)
    e(f"""
s_cmp_lt_u32 s28, 4
s_cbranch_scc0 L_nored1
s_mov_b32 s45, {SPIN}
s_lshl_b32 s40, s29, 5
v_mov_b32 v4, s40
L_f2:
global_load_dword v5, v4, s[24:25] offset:4 sc1
s_waitcnt vmcnt(0)
v_cmp_ne_u32 vcc, 32, v5
s_cbranch_vccz L_f2ok
s_sleep 4
s_sub_u32 s45, s45, 1
s_cbranch_scc0 L_f2
L_f2ok:
s_lshl_b32 s40, s29, 6
s_lshl_b32 s41, s28, 4
s_add_u32 s40, s40, s41
v_and_b32 v4, 3, v0
v_lshl_add_u32 v4, v4, 2, v3
v_add_u32 v4, s40, v4
v_lshlrev_b32 v159, 1, v4
global_load_ushort v154, v159, s[4:5]
s_lshl_b32 s40, s29, 13
s_lshl_b32 s41, s28, 11
s_add_u32 s40, s40, s41
s_add_u32 s40, s40, {YY}
v_lshl_add_u32 v155, v0, 4, s40
v_add_u32 v156, {ZZ-YY}, v155
s_waitcnt vmcnt(0)
v_lshlrev_b32 v154, 16, v154       ; x as f32
L_nored1:
v_lshlrev_b32 v4, 3, v0
v_mov_b32 v5, 0
s_mov_b32 s49, {f2u(LOG2E):#x}
v_and_b32 v6, 7, v0
v_lshlrev_b32 v6, 8, v6
v_lshl_add_u32 v6, v3, 4, v6
s_lshl_b32 s40, s28, 11
s_add_u32 s40, s40, {X2}
v_add_u32 v6, s40, v6
v_lshl_add_u32 v157, v3, 2, v2
v_and_b32 v157, 7, v157
s_lshl_b32 s40, s28, 7
s_add_u32 s40, s40, {ML}
v_lshl_add_u32 v157, v157, 3, s40
s_mov_b32 s45, {SPIN}
L_wo:
ds_read_b32 v8, v7 offset:4
s_waitcnt lgkmcnt(0)
v_readfirstlane_b32 s46, v8
s_cmp_lg_u32 s46, 0
s_cbranch_scc1 L_wook
s_sleep 1
s_sub_u32 s45, s45, 1
s_cbranch_scc0 L_wo
L_wook:
""")
    stamp(6)
    for i in range(16):
        e(f"s_mov_b32 m0, {L_WO+i*1024}\ns_mov_b32 s41, {i*8192}")
        e(f"buffer_load_dwordx4 v152, s[36:39], s41 offen {wflags} lds")
    for i in range(6):
        e(f"s_mov_b32 m0, {L_WD+i*1024}\ns_mov_b32 s41, {i*8192}")
        e(f"buffer_load_dwordx4 v{153 if i == 5 else 152}, s[32:35], s41 offen {wflags} lds")
    stamp(7)
    e("s_barrier")
    stamp(8)
    OB = 72; MB = 120
    for k in range(4): e(f"ds_read_b128 v[{MB+4*k}:{MB+4*k+3}], v5 offset:{L_ML+16*k}")
    for w in range(8): e(f"ds_read_b64 v[{OB+2*w}:{OB+2*w+1}], v4 offset:{L_O+512*w}")
    e("s_waitcnt lgkmcnt(8)")
    ms = [MB + 2 * w for w in range(8)]; ls = [MB + 2 * w + 1 for w in range(8)]
    e(f"v_max3_f32 v88, v{ms[0]}, v{ms[1]}, v{ms[2]}")
    e(f"v_max3_f32 v89, v{ms[3]}, v{ms[4]}, v{ms[5]}")
    e(f"v_max3_f32 v88, v88, v{ms[6]}, v{ms[7]}")
    e(f"v_max_f32 v88, v88, v89")
    for w in range(8): e(f"v_sub_f32 v{ms[w]}, v{ms[w]}, v88")
    for w in range(8): e(f"v_mul_f32 v{ms[w]}, s49, v{ms[w]}")
    for w in range(8): e(f"v_exp_f32 v{ms[w]}, v{ms[w]}")
    e("s_waitcnt lgkmcnt(0)")
    e(f"v_mul_f32 v90, v{ms[0]}, v{OB}\nv_mul_f32 v91, v{ms[0]}, v{OB+1}\nv_mul_f32 v92, v{ms[1]}, v{OB+2}\nv_mul_f32 v93, v{ms[1]}, v{OB+3}")
    for w in range(2, 8, 2):
        e(f"v_fmac_f32 v90, v{ms[w]}, v{OB+2*w}\nv_fmac_f32 v91, v{ms[w]}, v{OB+2*w+1}")
        e(f"v_fmac_f32 v92, v{ms[w+1]}, v{OB+2*w+2}\nv_fmac_f32 v93, v{ms[w+1]}, v{OB+2*w+3}")
    e("v_add_f32 v90, v90, v92\nv_add_f32 v91, v91, v93")
    e("v_cvt_pk_bf16_f32 v90, v90, v91\nv_min_u32 v90, -2, v90")
    e("global_store_dword v166, v90, s[26:27] sc1")
    e(f"v_mul_f32 v89, v{ms[0]}, v{ls[0]}\nv_mul_f32 v92, v{ms[1]}, v{ls[1]}")
    for w in range(2, 8, 2):
        e(f"v_fmac_f32 v89, v{ms[w]}, v{ls[w]}\nv_fmac_f32 v92, v{ms[w+1]}, v{ls[w+1]}")
    e("v_add_f32 v89, v89, v92\nv_min_u32 v88, -2, v88\nv_min_u32 v89, -2, v89")
    e("s_mov_b64 exec, 1\nglobal_store_dwordx2 v167, v[88:89], s[26:27] sc1\ns_mov_b64 exec, -1")
    stamp(9)
    AO = 104
    def p1_loads():
        e("global_load_dwordx2 v[120:121], v157, s[26:27] sc1")
        for t in range(4): e(f"global_load_dwordx4 v[{AO+4*t}:{AO+4*t+3}], v6, s[26:27] offset:{64*t} sc1")
    p1_loads()
    e("s_waitcnt vmcnt(7)")
    BD = 72; BO = 8; ZD = 124
    for t in range(2):
        for tile in range(4):
            for half in range(2):
                r = BD + (t * 4 + tile) * 4 + half * 2
                e(f"ds_read_b64_tr_b16 v[{r}:{r+1}], v158 offset:{L_WD + t*4096 + half*512 + tile*32}")
    for t in range(4):
        for tile in range(4):
            for half in range(2):
                r = BO + (t * 4 + tile) * 4 + half * 2
                e(f"ds_read_b64_tr_b16 v[{r}:{r+1}], v158 offset:{L_WO + t*4096 + half*512 + tile*32}")
                if t == 1 and tile == 3 and half == 1: e("s_waitcnt lgkmcnt(15)")
        if t == 1 or t == 2:
            tt = t - 1
            for tile in range(4):
                r = BD + (tt * 4 + tile) * 4
                c = "0" if tt == 0 else f"v[{ZD+4*tile}:{ZD+4*tile+3}]"
                e(f"v_mfma_f32_16x16x32_bf16 v[{ZD+4*tile}:{ZD+4*tile+3}], v[{AH+4*tt}:{AH+4*tt+3}], v[{r}:{r+3}], {c}")
    for tile in range(1, 4):
        e(f"v_mov_b32_dpp v{ZD}, v{ZD+4*tile} quad_perm:[0,1,2,3] row_mask:{1<<tile:#x} bank_mask:0xf")
    e(f"""
v_min_u32 v{ZD}, -2, v{ZD}
v_add_u32 v7, {ZZ-YY}, v161
global_store_dword v7, v{ZD}, s[26:27] sc1
s_mov_b32 s45, {SPIN}
s_waitcnt vmcnt(1)
s_branch L_p1chk
L_p1:
""")
    p1_loads()
    e("s_waitcnt vmcnt(0)\nL_p1chk:")
    e(f"v_max3_u32 v122, v120, v121, v{AO}")
    e(f"v_max3_u32 v123, v{AO+1}, v{AO+2}, v{AO+3}")
    for k in range(4, 16, 4):
        e(f"v_max3_u32 v122, v122, v{AO+k}, v{AO+k+1}")
        e(f"v_max3_u32 v123, v123, v{AO+k+2}, v{AO+k+3}")
    e(f"""
v_max_u32 v122, v122, v123
v_cmp_eq_u32 vcc, -1, v122
s_cbranch_vccz L_p1ok
s_sub_u32 s45, s45, 1
s_cbranch_scc0 L_p1
L_p1ok:
s_waitcnt lgkmcnt(0)
""")
    stamp(10)
    YD = 124
    for t in range(4):
        for tile in range(4):
            r = BO + (t * 4 + tile) * 4
            c = "0" if t == 0 else f"v[{YD+4*tile}:{YD+4*tile+3}]"
            e(f"v_mfma_f32_16x16x32_bf16 v[{YD+4*tile}:{YD+4*tile+3}], v[{AO+4*t}:{AO+4*t+3}], v[{r}:{r+3}], {c}")
        if t == 0:
            e(f"v_max_f32_dpp v122, v120, v120 row_ror:4 {DPPF}")
            e(f"v_max_f32_dpp v122, v122, v122 row_ror:2 {DPPF}")
            e(f"v_max_f32_dpp v122, v122, v122 row_ror:1 {DPPF}")
            e("v_sub_f32 v120, v120, v122\nv_mul_f32 v120, s49, v120\nv_exp_f32 v120, v120")
        if t == 1:
            e("v_mul_f32 v121, v120, v121")
            e(f"v_add_f32_dpp v121, v121, v121 row_ror:4 {DPPF}")
            e(f"v_add_f32_dpp v121, v121, v121 row_ror:2 {DPPF}")
            e(f"v_add_f32_dpp v121, v121, v121 row_ror:1 {DPPF}")
        if t == 2:
            e("v_rcp_f32 v121, v121\nv_mul_f32 v120, v120, v121")
    for tile in range(4):
        e(f"v_mul_f32_dpp v{92+tile}, v120, v{YD+4*tile} row_newbcast:0 {DPPF}")
    for r in range(1, 4):
        for tile in range(4):
            e(f"v_fmac_f32_dpp v{92+tile}, v120, v{YD+4*tile+r} row_newbcast:{r} {DPPF}")
    e("""
v_permlane16_swap_b32 v92, v93
v_permlane16_swap_b32 v94, v95
v_add_f32 v92, v92, v93
v_add_f32_dpp v92, v94, v95 quad_perm:[0,1,2,3] row_mask:0xc bank_mask:0xf
v_min_u32 v92, -2, v92
global_store_dword v161, v92, s[26:27] sc1
""")
    e("s_cmp_lt_u32 s28, 4\ns_cbranch_scc0 L_fin")
    a = 8; z = 16
    e(f"""
s_mov_b32 s45, {SPIN}
L_py:
global_load_dwordx4 v[{z}:{z+3}], v156, s[26:27] sc1
global_load_dwordx4 v[{z+4}:{z+7}], v156, s[26:27] offset:1024 sc1
global_load_dwordx4 v[{a}:{a+3}], v155, s[26:27] sc1
global_load_dwordx4 v[{a+4}:{a+7}], v155, s[26:27] offset:1024 sc1
s_waitcnt vmcnt(0)
v_max3_u32 v24, v8, v9, v10
v_max3_u32 v25, v11, v12, v13
v_max3_u32 v26, v14, v15, v16
v_max3_u32 v27, v17, v18, v19
v_max3_u32 v24, v24, v20, v21
v_max3_u32 v25, v25, v22, v23
v_max3_u32 v24, v24, v26, v27
v_max_u32 v24, v24, v25
v_cmp_eq_u32 vcc, -1, v24
s_cbranch_vccz L_pyok
s_sub_u32 s45, s45, 1
s_cbranch_scc0 L_py
L_pyok:
""")
    for k in range(4): e(f"v_add_f32 v{a+k}, v{a+k}, v{a+4+k}\nv_add_f32 v{z+k}, v{z+k}, v{z+4+k}")
    for b in (a, z): e(f"v_permlane32_swap_b32 v{b}, v{b+2}\nv_permlane32_swap_b32 v{b+1}, v{b+3}")
    for b in (a, z): e(f"v_add_f32 v{b}, v{b}, v{b+2}\nv_add_f32 v{b+1}, v{b+1}, v{b+3}")
    for b in (a, z): e(f"v_permlane16_swap_b32 v{b}, v{b+1}")
    for b in (a, z): e(f"v_add_f32 v{b}, v{b}, v{b+1}")
    for b in (a, z): e(f"v_add_f32_dpp v{b}, v{b}, v{b} row_ror:4 {DPPF}")
    for b in (a, z): e(f"v_add_f32_dpp v{b}, v{b}, v{b} row_ror:8 {DPPF}")
    e(f"""
v_cvt_pk_bf16_f32 v{a}, v{a}, v{z}
v_lshlrev_b32 v{a+1}, 16, v{a}
v_and_b32 v{z}, s48, v{a}
v_add_f32 v{a+1}, v154, v{a+1}
v_cvt_pk_bf16_f32 v{a+1}, v{a+1}, v{a+1}
v_and_b32 v{a+1}, s48, v{a+1}
v_add_f32 v{a+1}, v{a+1}, v{z}
v_cvt_pk_bf16_f32 v{a+1}, v{a+1}, v{a+1}
s_mov_b32 s40, 0x000f000f
s_mov_b32 s41, 0x000f000f
s_mov_b64 exec, s[40:41]
global_store_short v159, v{a+1}, s[22:23]
s_mov_b64 exec, -1
L_fin:
""")
    stamp(11)
    stamp_out()
    e("L_end:\ns_endpgm")
    hdr = open("cdna_kernels/" + NAME + ".s.ref").read().split("; Override launch")[0]
    return hdr + f"""; @launch grid=(256,1,1) block=(576,1,1) lds={L_SIZE}
.amdgcn_target "amdgcn-amd-amdhsa--gfx950"
.text
.globl {NAME}_kernel
.p2align 8
.type {NAME}_kernel,@function
{NAME}_kernel:
{e.text()}
.section .rodata,"a"
.p2align 6
.amdhsa_kernel {NAME}_kernel
  .amdhsa_next_free_vgpr 168
  .amdhsa_next_free_sgpr 96
  .amdhsa_accum_offset 168
  .amdhsa_group_segment_fixed_size 0
  .amdhsa_kernarg_size 96
  .amdhsa_user_sgpr_count 2
  .amdhsa_user_sgpr_kernarg_segment_ptr 1
  .amdhsa_system_sgpr_workgroup_id_x 1
.end_amdhsa_kernel
"""
if __name__ == "__main__":
    V = {"a": dict(), "d4": dict(depth=4), "wo10": dict(woslot=10), "wo27": dict(woslot=27), "q20": dict(qslot=20), "d2": dict(depth=2)}
    names = []
    for k, v in V.items():
        open(f"k3_{k}.s", "w").write(gen(**v)); names.append(f"k3_{k}.s")
    for k in ("a", "wo10"):
        open(f"k3_{k}_st.s", "w").write(gen(stamps=True, **V[k])); names.append(f"k3_{k}_st.s")
    print(" ".join(names))
```

```python
import sys, struct
from emit import Emit
NAME = "parallel_sum__sliding_block_cached__geglu_ffn__decode"
def f2u(x): return struct.unpack("<I", struct.pack("<f", x))[0]
LOG2E = 1.4426950408889634
X1 = 0x00000; ML = 0x48000; X2 = 0x50000; YY = 0x80000
L_WO = 0; L_WD = 16384; L_O = 24576; L_ML = 28672; L_Q = 28736; L_AH = 28992; L_FLAG = 29120; L_SIZE = 29184
SPIN = 1 << 17
DPPF = "row_mask:0xf bank_mask:0xf"
XORACC = "bitop3:0xbe"

def gen(stamps=False, hmul=0x3779B1, hshift=13, hmask=127, chunk=1, kvflags="nt", wflags="nt",
        depth=3, qslot=24, woslot=31, wowave=5, depth2=5, d2slot=16, slotstamps=False,
        gslot=7, forceremote=False, pollf="sc1 nt", glook=8, codepf=True, npoll2=3, npoll1=2, pace=None, dbg='', gflag=None, stag=6, tailst=False, wocnt=8, prio=2, acc2=True, pollf2='sc1 nt', ystf='sc1', pollf1=None):
    e = Emit()
    NST = 12
    lab = [0]
    def stamp(i):
        if stamps: e(f"s_memrealtime s[{60+2*i}:{61+2*i}]")
    def stamp_out():
        if not stamps: return
        e("s_waitcnt lgkmcnt(0)")
        e(f"s_mul_i32 s58, s2, 9\ns_add_u32 s58, s58, s30\ns_mul_i32 s58, s58, {NST*8}")
        e("s_add_u32 s86, s26, 0x20000000\ns_addc_u32 s87, s27, 0")
        e("s_mov_b64 exec, 1\nv_mov_b32 v0, s58")
        for i in range(NST):
            e(f"v_mov_b32 v2, s{60+2*i}\nv_mov_b32 v3, s{61+2*i}\nglobal_store_dwordx2 v0, v[2:3], s[86:87] offset:{8*i}\ns_nop 1")
    def pv(base, i, acc, plo, phi, bc):
        o = []
        for k in range(4):
            o.append(f"v_dot2c_f32_bf16_dpp v{acc+2*k}, v{plo}, v{base+4*i+k} row_newbcast:{bc} {DPPF}")
            o.append(f"v_dot2c_f32_bf16_dpp v{acc+2*k+1}, v{phi}, v{base+4*i+k} row_newbcast:{bc} {DPPF}")
        return "\n".join(o)
    def red8(acc):
        for k in range(4): e(f"v_permlane32_swap_b32 v{acc+k}, v{acc+k+4}")
        for k in range(4): e(f"v_add_f32 v{acc+k}, v{acc+k}, v{acc+k+4}")
        for k in range(2): e(f"v_permlane16_swap_b32 v{acc+k}, v{acc+k+2}")
        for k in range(2): e(f"v_add_f32 v{acc+k}, v{acc+k}, v{acc+k+2}")
    def pub(*stores):
        lab[0] += 1; n = lab[0]
        e(f"s_cmp_lg_u32 s56, 0\ns_cbranch_scc1 L_loc{n}")
        for s_ in stores: e(s_ + (" sc1" if s_.startswith("global") else ""))
        e(f"s_branch L_pub{n}\nL_loc{n}:")
        for s_ in stores: e(s_)
        e(f"L_pub{n}:")
    def ldswait(label, off, val=None):
        e(f"""
s_mov_b32 s45, {SPIN}
{label}:
ds_read_b32 v8, v7 offset:{off}
s_waitcnt lgkmcnt(0)
v_readfirstlane_b32 s46, v8
{"s_cmp_lg_u32 s46, 0" if val is None else f"s_cmp_ge_u32 s46, {val}"}
s_cbranch_scc1 {label}ok
s_sleep 1
s_sub_u32 s45, s45, 1
s_cbranch_scc0 {label}
{label}ok:
""")
    KB, VB = 8, 72
    R = 140; ACC = 156; Q = 136
    def idx(i): return ((i // chunk) * (chunk * 8) + i % chunk) * 1024
    issued = [0]; known = [-1]
    def issue():
        n = issued[0]
        if n >= 32: return
        i = n & 15
        if n == 0: soff = "s42"
        else:
            e(f"s_xor_b32 s41, s42, {idx(i)}"); soff = "s41"
        dp = depth if n < d2slot else depth2
        if n >= dp and n - dp > known[0]: e(f"s_waitcnt vmcnt({dp-1})"); known[0] = n - dp
        if slotstamps and n in (8, 16, 28): stamp({8: 9, 16: 10, 28: 11}[n])
        if n < 16: e(f"buffer_load_dwordx4 v[{KB+4*i}:{KB+4*i+3}], v1, s[32:35], {soff} offen {kvflags}")
        else: e(f"buffer_load_dwordx4 v[{VB+4*i}:{VB+4*i+3}], v1, s[36:39], {soff} offen {kvflags}")
        issued[0] += 1
        if n == woslot: e("s_mov_b64 exec, 1\nds_add_u32 v3, v7 offset:4\ns_mov_b64 exec, -1")
        for sl, off in ((gslot, 8),):
            if sl is not None and n == sl:
                e(f"s_cmp_lg_u32 s30, {wowave}\ns_cbranch_scc1 L_nosig{off}\nds_write_b32 v3, v7 offset:{off}\nL_nosig{off}:")
    def need(n):
        if n > known[0]: e(f"s_waitcnt vmcnt({issued[0] - 1 - n})"); known[0] = n
    e(f"""
s_load_dwordx16 s[4:19], s[0:1], 0
s_load_dwordx8 s[20:27], s[0:1], 64
""")
    stamp(0)
    e(f"""
s_cmpk_ge_u32 s2, 256
s_cbranch_scc1 L_end
v_lshrrev_b32 v1, 6, v0
v_and_b32 v0, 63, v0
s_and_b32 s28, s2, 7
v_readfirstlane_b32 s30, v1
s_lshr_b32 s29, s2, 6
s_lshl_b32 s29, s29, 3
s_add_u32 s28, s28, s29
s_bfe_u32 s29, s2, 0x30003
v_lshlrev_b32 v1, 4, v0
s_mov_b32 s35, 0x20000
s_cmp_eq_u32 s30, 0
s_cbranch_scc1 L_aux
s_lshl_b32 s40, s28, 23
s_lshl_b32 s41, s29, 17
s_add_u32 s40, s40, s41
s_add_u32 s40, s40, {(32768-4096)*256}
s_mov_b32 s34, s35
s_mul_i32 s42, s2, {hmul}
s_bfe_u32 s42, s42, {hshift | (hmask.bit_length() << 16):#x}
s_sub_u32 s43, s30, 1
{f"s_mul_i32 s44, s43, {chunk}" if chunk != 1 else ""}
s_xor_b32 s42, s42, {"s44" if chunk != 1 else "s43"}
s_lshl_b32 s42, s42, 10
s_waitcnt lgkmcnt(0)
s_add_u32 s32, s6, s40
s_addc_u32 s33, s7, 0
s_and_b32 s33, s33, 0xffff
""")
    for _ in range(depth): issue()
    e("s_branch L_att")
    e.hist = []
    e("L_aux:")
    WQ, GU = 8, 72
    e(f"""
v_and_b32 v2, 15, v0
v_lshrrev_b32 v3, 4, v0
v_lshl_add_u32 v4, v2, 2, v3
s_lshl_b32 s40, s29, 7
v_lshl_add_u32 v5, v4, 1, s40
v_lshlrev_b32 v6, 13, v3
v_lshl_add_u32 v6, v2, 4, v6
s_lshl_b32 s40, s29, 19
s_lshl_b32 s41, s28, 8
s_add_u32 s40, s40, s41
s_sub_u32 s34, {512*8192}, s40
s_mov_b32 s41, 0
s_mov_b32 s42, 32768
s_waitcnt lgkmcnt(0)
global_load_dwordx4 v[136:139], v1, s[4:5]
global_load_ushort v160, v5, s[4:5]
s_add_u32 s32, s10, s40
s_addc_u32 s33, s11, 0
s_and_b32 s33, s33, 0xffff
""")
    for i in range(16):
        e(f"buffer_load_dwordx4 v[{WQ+4*i}:{WQ+4*i+3}], v6, s[32:35], s41 offen {wflags}")
        if i < 15: e("s_add_u32 s41, s41, s42")
    if stamps:
        for i in range(1, NST): e(f"s_mov_b64 s[{60+2*i}:{61+2*i}], 0")
    stamp(1)
    e(f"""
s_and_b32 s50, s28, 7
s_lshl_b32 s50, s50, 2
s_lshr_b32 s51, s28, 3
s_add_u32 s50, s50, s51
s_mul_i32 s50, s50, 43
s_add_u32 s51, s50, 43
s_lshr_b32 s50, s50, 3
s_lshr_b32 s51, s51, 3
s_sub_u32 s51, s51, s50
s_sub_u32 s42, s51, 1
v_lshrrev_b32 v7, 1, v2
v_min_u32 v7, s42, v7
v_add_u32 v7, s50, v7
v_lshlrev_b32 v7, 4, v7
s_lshl_b32 s41, s29, 6
v_add_u32 v161, s41, v3
s_movk_i32 s41, 2752
v_mul_lo_u32 v161, v161, s41
v_add_u32 v7, v7, v161
v_and_b32 v161, 1, v0
v_cmp_eq_u32 vcc, 0, v161
v_mov_b32 v162, s16
v_mov_b32 v163, s17
v_mov_b32 v164, s18
v_mov_b32 v165, s19
v_cndmask_b32 v162, v164, v162, vcc
v_cndmask_b32 v163, v165, v163, vcc
v_add_co_u32 v162, vcc, v162, v7
v_addc_co_u32 v163, vcc, 0, v163, vcc
s_movk_i32 s40, {4*2752}
s_mov_b32 s41, 0
""")
    for i in range(16):
        e(f"global_load_dwordx4 v[{GU+4*i}:{GU+4*i+3}], v[162:163], off {wflags}")
        if i < 15: e("v_lshl_add_u64 v[162:163], v[162:163], 0, s[40:41]")
    e(f"""
v_mov_b32 v4, 0
v_mov_b32 v5, 0
v_mov_b32 v7, {L_FLAG}
ds_write_b64 v7, v[4:5]
ds_write_b64 v7, v[4:5] offset:8
s_getreg_b32 s31, hwreg(HW_REG_XCC_ID, 0, 4)
s_and_b32 s31, s31, 7
s_and_b32 s52, s28, 7
s_lshl_b32 s52, s52, 5
v_mov_b32 v167, s52
s_lshl_b32 s52, s28, 3
s_add_u32 s52, s52, s29            ; r = h*8+s
s_waitcnt lgkmcnt(0)
s_barrier
""")
    QA, GA = 140, 148
    for i in range(16): e(f"v_mov_b32 v{QA+i}, 0")
    e("s_mov_b32 s48, 0xffff0000")
    e("s_waitcnt vmcnt(32)")
    def wsum(r, t):
        e(f"v_add_f32_dpp v{r}, v{r}, v{r} quad_perm:[1,0,3,2] {DPPF}")
        e(f"v_add_f32_dpp v{r}, v{r}, v{r} quad_perm:[2,3,0,1] {DPPF}")
        e(f"v_add_f32_dpp v{r}, v{r}, v{r} row_ror:4 {DPPF}")
        e(f"v_add_f32_dpp v{r}, v{r}, v{r} row_ror:8 {DPPF}")
        e(f"v_mov_b32 v{t}, v{r}")
        e(f"v_permlane16_swap_b32 v{r}, v{t}")
        e(f"v_add_f32 v{r}, v{r}, v{t}")
        e(f"v_mov_b32 v{t}, v{r}")
        e(f"v_permlane32_swap_b32 v{r}, v{t}")
        e(f"v_add_f32 v{r}, v{r}, v{t}")
    for k in range(4): e(f"v_and_b32 v{156+k}, s48, v{136+k}")
    for k in range(4): e(f"v_lshlrev_b32 v{136+k}, 16, v{136+k}")
    e("""
v_add_f32 v4, v136, v156
v_add_f32 v5, v137, v157
v_add_f32 v6, v138, v158
v_add_f32 v164, v139, v159
v_add_f32 v4, v4, v5
v_add_f32 v6, v6, v164
v_add_f32 v4, v4, v6
""")
    wsum(4, 5)
    e(f"v_mul_f32 v4, {f2u(1/512):#x}, v4")
    for k in range(4): e(f"v_sub_f32 v{136+k}, v{136+k}, v4")
    for k in range(4): e(f"v_sub_f32 v{156+k}, v{156+k}, v4")
    e("v_mul_f32 v6, v136, v136\nv_mul_f32 v164, v156, v156")
    for k in range(1, 4): e(f"v_fmac_f32 v6, v{136+k}, v{136+k}\nv_fmac_f32 v164, v{156+k}, v{156+k}")
    e("v_add_f32 v6, v6, v164")
    wsum(6, 5)
    e(f"""
v_mul_f32 v6, {f2u(1/512):#x}, v6
v_cvt_pk_bf16_f32 v5, v4, v6
v_lshlrev_b32 v4, 16, v5           ; bf16(mean)
v_and_b32 v6, s48, v5              ; bf16(var)
v_add_f32 v6, {f2u(1e-5):#x}, v6
v_cvt_pk_bf16_f32 v6, v6, v6
v_and_b32 v6, s48, v6
v_sqrt_f32 v6, v6
v_lshlrev_b32 v160, 16, v160
v_sub_f32 v160, v160, v4
v_cvt_pk_bf16_f32 v6, v6, v160
v_and_b32 v160, s48, v6
v_lshlrev_b32 v6, 16, v6
v_rcp_f32 v6, v6
v_mul_f32 v160, v160, v6
v_cvt_pk_bf16_f32 v156, v160, 0
v_lshlrev_b32 v157, 16, v156
""")
    stamp(2)
    for i in range(16):
        e(f"s_waitcnt vmcnt({31-i})")
        e(pv(WQ, i, QA, 156, 157, i))
    for i in range(16):
        e(f"s_waitcnt vmcnt({15-i + (1 if i > glook else 0)})")
        e(pv(GU, i, GA, 156, 157, i))
        if i == glook: e("global_load_dword v162, v167, s[24:25] sc1")
    red8(QA)
    red8(GA)
    e(f"""
s_mov_b32 s45, {SPIN}
s_branch L_gwchk
L_gw0:
global_load_dword v162, v167, s[24:25] sc1
L_gwchk:
s_waitcnt vmcnt(0)
v_readfirstlane_b32 s55, v162
s_cmp_lg_u32 s55, 0
s_cbranch_scc1 L_gwok0
s_sub_u32 s45, s45, 1
s_cbranch_scc0 L_gw0
L_gwok0:
s_bfe_u32 s40, s55, 0x30001
s_cmp_eq_u32 s40, s31
s_cselect_b32 s56, {0 if forceremote else 1}, 0
s_xor_b32 s57, s56, 1
s_mov_b32 s53, 0xffffff00
v_and_b32 v4, 1, v3
v_lshlrev_b32 v4, 4, v4
v_lshrrev_b32 v4, v4, s55
v_and_b32 v5, 0xfe, v4
v_bfe_u32 v4, v4, 9, 7
v_or_b32 v5, s57, v5
v_lshl_or_b32 v4, v4, 1, s57
v_add_u32 v{GA}, 0x80, v{GA}
v_add_u32 v{GA+1}, 0x80, v{GA+1}
v_and_or_b32 v{QA+2}, v{GA}, s53, v5
v_and_or_b32 v{QA+3}, v{GA+1}, s53, v4
v_lshl_add_u32 v4, v2, 2, v3
s_lshl_b32 s40, s52, 10
v_lshl_add_u32 v165, v4, 4, s40
""")
    assert X1 == 0
    if 'nopub' not in dbg: pub(f"global_store_dwordx4 v165, v[{QA}:{QA+3}], s[26:27]")
    stamp(3)
    c1 = -2.0 * 0.7978845608028654 * LOG2E
    AH = 144
    if gslot is not None: ldswait("L_gw", 8)
    e(f"""
s_lshl_b32 s40, s28, 13
v_lshl_add_u32 v40, v0, 4, s40
v_add_u32 v41, 4096, v40
v_and_b32 v6, 7, v0
v_and_b32 v4, 1, v0
v_lshlrev_b32 v4, 4, v4
v_lshrrev_b32 v158, v4, s55
v_lshrrev_b32 v159, 8, v158
s_mov_b32 s45, {SPIN}
L_g1:
""")
    for p in range(8):
        if 'nog' not in dbg: e(f"global_load_dwordx4 v[{8+4*p}:{11+4*p}], v{40+(p>>2)}, s[26:27] offset:{(p&3)*1024} {gflag or pollf}")
    for p in range(8):
        e(f"s_waitcnt vmcnt({7-p})")
        if p == 0: e("v_xor_b32 v44, v158, v10\nv_xor_b32 v45, v159, v11")
        else: e(f"v_bitop3_b32 v44, v158, v{10+4*p}, v44 {XORACC}\nv_bitop3_b32 v45, v159, v{11+4*p}, v45 {XORACC}")
    e(f"""
v_or_b32 v44, v44, v45
v_and_b32 v44, 0xfe, v44
v_cmp_ne_u32 vcc, 0, v44
{"s_branch L_g1_ok" if ('nog' in dbg or 'one' in dbg) else ""}
s_cbranch_vccz L_g1_ok
s_sub_u32 s45, s45, 1
s_cbranch_scc0 L_g1
L_g1_ok:
v_or3_b32 v44, v10, v14, v18
v_or3_b32 v45, v22, v26, v30
v_or3_b32 v44, v44, v34, v38
v_or_b32 v44, v44, v45
v_and_b32 v44, s56, v44
v_cmp_ne_u32 vcc, 0, v44
s_cbranch_vccz L_g1_same
s_mov_b32 s56, 0
global_store_dwordx4 v165, v[{QA}:{QA+3}], s[26:27] sc1
L_g1_same:
""")
    for p in range(1, 8): e(f"v_add_f32 v8, v8, v{8+4*p}\nv_add_f32 v9, v9, v{9+4*p}")
    e(f"""
v_cvt_pk_bf16_f32 v12, v8, v9
v_lshlrev_b32 v4, 2, v0
ds_write_b32 v4, v12 offset:{L_Q}
v_mov_b32 v5, 1
ds_write_b32 v7, v5
""")
    stamp(4)
    for p in range(8): e(f"v_and_b32 v{10+4*p}, s53, v{10+4*p}\nv_and_b32 v{11+4*p}, s53, v{11+4*p}")
    for p in range(1, 8): e(f"v_add_f32 v10, v10, v{10+4*p}\nv_add_f32 v11, v11, v{11+4*p}")
    e(f"""
v_cvt_pk_bf16_f32 v12, v10, v11
v_mov_b32_dpp v13, v12 row_shl:4 {DPPF}
v_lshlrev_b32 v14, 16, v12
v_and_b32 v15, s48, v12
s_mov_b32 s40, {f2u(0.044715):#x}
s_mov_b32 s41, {f2u(c1):#x}
v_mul_f32 v16, v14, v14
v_mul_f32 v17, v15, v15
v_mul_f32 v16, v16, v14
v_mul_f32 v17, v17, v15
v_fma_f32 v16, v16, s40, v14
v_fma_f32 v17, v17, s40, v15
v_mul_f32 v16, s41, v16
v_mul_f32 v17, s41, v17
v_exp_f32 v16, v16
v_exp_f32 v17, v17
v_add_f32 v16, 1.0, v16
v_add_f32 v17, 1.0, v17
v_rcp_f32 v16, v16
v_rcp_f32 v17, v17
v_mul_f32 v14, v14, v16
v_mul_f32 v15, v15, v17
v_cvt_pk_bf16_f32 v14, v14, v15
v_lshlrev_b32 v16, 16, v13
v_and_b32 v17, s48, v13
v_and_b32 v15, s48, v14
v_lshlrev_b32 v14, 16, v14
v_mul_f32 v14, v14, v16
v_mul_f32 v15, v15, v17
v_cvt_pk_bf16_f32 v14, v14, v15
v_lshrrev_b32 v5, 3, v0
v_cmp_gt_u32 vcc, s51, v5
v_cndmask_b32 v14, 0, v14, vcc
v_and_b32 v4, 3, v0
v_lshl_add_u32 v4, v5, 2, v4
v_lshlrev_b32 v4, 2, v4
s_mov_b32 exec_lo, 0x0f0f0f0f
s_mov_b32 exec_hi, 0x0f0f0f0f
ds_write_b32 v4, v14 offset:{L_AH}
s_mov_b64 exec, -1
v_lshlrev_b32 v5, 4, v3
ds_read_b128 v[{AH}:{AH+3}], v5 offset:{L_AH}
ds_read_b128 v[{AH+4}:{AH+7}], v5 offset:{L_AH+64}
v_mov_b32 v140, 0
v_mov_b32 v141, 0
v_mov_b32 v142, 0
v_mov_b32 v143, 0
ds_write_b128 v1, v[140:143] offset:{L_WD+6*1024}
ds_write_b128 v1, v[140:143] offset:{L_WD+7*1024}
v_lshlrev_b32 v160, 10, v3
v_lshrrev_b32 v5, 2, v2
v_lshl_add_u32 v160, v5, 7, v160
v_and_b32 v5, 3, v0
v_lshl_add_u32 v160, v5, 3, v160
v_bfe_u32 v5, v0, 3, 2
v_lshl_add_u32 v160, v5, 5, v160   ; tile 0
v_xor_b32 v162, 32, v160
v_xor_b32 v163, 64, v160
v_xor_b32 v164, 0x60, v160
s_lshl_b32 s40, s50, 13
s_lshl_b32 s41, s29, 7
s_add_u32 s40, s40, s41
s_add_u32 s32, s20, s40
s_addc_u32 s33, s21, 0
s_and_b32 s33, s33, 0xffff
s_sub_u32 s34, {1376*1024}, s40
s_lshl_b32 s40, s28, 17
s_add_u32 s40, s40, s41
s_add_u32 s36, s12, s40
s_addc_u32 s37, s13, 0
s_and_b32 s37, s37, 0xffff
s_sub_u32 s38, {4096*1024}, s40
s_mov_b32 s39, 0x20000
v_lshrrev_b32 v152, 3, v0
v_lshlrev_b32 v152, 10, v152
v_lshl_add_u32 v152, v6, 4, v152
v_and_b32 v5, 16, v0
v_lshlrev_b32 v5, 1, v5
v_xor_b32 v152, v5, v152
v_xor_b32 v153, 64, v152
s_cmp_eq_u32 s51, 6
s_cselect_b32 s40, 0, {0x7ff00000}
v_add_u32 v8, s40, v153
s_movk_i32 s42, 0x2000
s_mov_b32 s41, 0
s_mov_b32 m0, {L_WD}
s_waitcnt lgkmcnt(0)
buffer_load_dwordx4 v152, s[32:35], s41 offen {wflags} lds
s_mov_b32 m0, {L_WD+1024}
s_add_u32 s41, s41, s42
buffer_load_dwordx4 v153, s[32:35], s41 offen {wflags} lds
s_mov_b32 m0, {L_WD+2048}
s_add_u32 s41, s41, s42
buffer_load_dwordx4 v152, s[32:35], s41 offen {wflags} lds
s_mov_b32 m0, {L_WD+3072}
s_add_u32 s41, s41, s42
buffer_load_dwordx4 v153, s[32:35], s41 offen {wflags} lds
s_mov_b32 m0, {L_WD+4096}
s_add_u32 s41, s41, s42
buffer_load_dwordx4 v152, s[32:35], s41 offen {wflags} lds
s_mov_b32 m0, {L_WD+5120}
s_add_u32 s41, s41, s42
buffer_load_dwordx4 v8, s[32:35], s41 offen {wflags} lds
s_lshl_b32 s40, s29, 14
s_lshl_b32 s41, s28, 7
s_add_u32 s40, s40, s41
s_add_u32 s40, s40, {YY}
v_lshlrev_b32 v161, 12, v3
v_lshl_add_u32 v161, v2, 3, v161
v_add_u32 v161, s40, v161
v_and_b32 v158, 0xff, v158
v_and_b32 v159, 0xff, v159
""")
    EX = 88
    e(f"""
s_cmp_lt_u32 s28, 4
s_cbranch_scc0 L_nored1
s_mov_b32 s45, {SPIN}
v_lshrrev_b32 v4, 3, v0
v_lshlrev_b32 v4, 5, v4
L_f2:
global_load_dword v{EX}, v4, s[24:25] sc1
s_waitcnt vmcnt(0)
v_cmp_eq_u32 vcc, 0, v{EX}
s_cbranch_vccz L_f2ok
s_sleep 4
s_sub_u32 s45, s45, 1
s_cbranch_scc0 L_f2
L_f2ok:
v_lshrrev_b32 v{EX+1}, 8, v{EX}
v_lshrrev_b32 v{EX+2}, 16, v{EX}
v_lshrrev_b32 v{EX+3}, 24, v{EX}
s_lshl_b32 s40, s29, 6
s_lshl_b32 s41, s28, 4
s_add_u32 s40, s40, s41
v_lshrrev_b32 v4, 5, v0
v_lshl_add_u32 v4, v6, 1, v4
v_add_u32 v4, s40, v4
v_lshlrev_b32 v156, 1, v4
global_load_ushort v154, v156, s[4:5]
s_lshl_b32 s40, s29, 14
s_lshl_b32 s41, s28, 12
s_add_u32 s40, s40, s41
s_add_u32 s40, s40, {YY}
v_lshl_add_u32 v155, v0, 4, s40
s_waitcnt vmcnt(0)
v_lshlrev_b32 v154, 16, v154       ; x as f32
L_nored1:
v_lshlrev_b32 v4, 3, v0
v_mov_b32 v5, 0
s_mov_b32 s49, {f2u(LOG2E):#x}
s_lshl_b32 s40, s28, 12
s_add_u32 s40, s40, {X2}
v_lshl_add_u32 v6, v0, 4, s40
v_and_b32 v8, 1, v0
v_lshlrev_b32 v166, 3, v8
v_bfe_u32 v8, v0, 1, 1
v_lshl_add_u32 v166, v8, 10, v166
v_bfe_u32 v8, v0, 2, 2
v_lshl_add_u32 v166, v8, 8, v166
v_bfe_u32 v8, v0, 4, 1
v_lshl_add_u32 v166, v8, 11, v166
v_lshrrev_b32 v8, 5, v0
v_lshl_add_u32 v166, v8, 7, v166
s_lshl_b32 s41, s29, 4
s_add_u32 s40, s40, s41
v_add_u32 v166, s40, v166
v_lshl_add_u32 v157, v3, 2, v2
v_and_b32 v157, 7, v157
s_lshl_b32 s40, s28, 7
s_add_u32 s40, s40, {ML}
v_lshl_add_u32 v157, v157, 4, s40
s_lshl_b32 s41, s29, 4
s_add_u32 s40, s40, s41
v_mov_b32 v167, s40
v_mov_b32 v139, s55
v_mov_b32 v141, s55
v_mov_b32 v143, s55
""")
    TA = [160, 162, 163, 164]
    ZD = 124; ZR = 165
    e("s_waitcnt vmcnt(0)")
    for t in range(2):
        for tile in range(4):
            for half in range(2):
                r = 40 + (t * 4 + tile) * 4 + half * 2
                e(f"ds_read_b64_tr_b16 v[{r}:{r+1}], v{TA[tile]} offset:{L_WD + t*4096 + half*512}")
    e("s_waitcnt lgkmcnt(0)")
    for tt in range(2):
        for tile in range(4):
            r = 40 + (tt * 4 + tile) * 4
            c = "0" if tt == 0 else f"v[{ZD+4*tile}:{ZD+4*tile+3}]"
            e(f"v_mfma_f32_16x16x32_bf16 v[{ZD+4*tile}:{ZD+4*tile+3}], v[{AH+4*tt}:{AH+4*tt+3}], v[{r}:{r+3}], {c}")
    e(f"v_mov_b32 v{ZR}, v{ZD}")
    for tile in range(1, 4):
        e(f"v_mov_b32_dpp v{ZR}, v{ZD+4*tile} quad_perm:[0,1,2,3] row_mask:{1<<tile:#x} bank_mask:0xf")
    e(f"v_add_u32 v{ZR}, 0x80, v{ZR}\nv_and_or_b32 v145, v{ZR}, s53, v159\nv_mov_b32 v139, s55")
    stamp(5)
    ldswait("L_ml", 12, 8)
    OB = 72; MB = 120
    for k in range(4): e(f"ds_read_b128 v[{MB+4*k}:{MB+4*k+3}], v5 offset:{L_ML+16*k}")
    e("s_waitcnt lgkmcnt(0)")
    ms = [MB + 2 * w for w in range(8)]; ls = [MB + 2 * w + 1 for w in range(8)]
    e(f"v_max3_f32 v140, v{ms[0]}, v{ms[1]}, v{ms[2]}")
    e(f"v_max3_f32 v142, v{ms[3]}, v{ms[4]}, v{ms[5]}")
    e(f"v_max3_f32 v140, v140, v{ms[6]}, v{ms[7]}")
    e(f"v_max_f32 v140, v140, v142")
    for w in range(8): e(f"v_sub_f32 v{ms[w]}, v{ms[w]}, v140")
    for w in range(8): e(f"v_mul_f32 v{ms[w]}, s49, v{ms[w]}")
    for w in range(8): e(f"v_exp_f32 v{ms[w]}, v{ms[w]}")
    e(f"v_mul_f32 v142, v{ms[0]}, v{ls[0]}\nv_mul_f32 v108, v{ms[1]}, v{ls[1]}")
    for w in range(2, 8, 2):
        e(f"v_fmac_f32 v142, v{ms[w]}, v{ls[w]}\nv_fmac_f32 v108, v{ms[w+1]}, v{ls[w+1]}")
    e("v_add_f32 v142, v142, v108")
    pub("s_mov_b64 exec, 1", "global_store_dwordx4 v167, v[140:143], s[26:27]", "s_mov_b64 exec, -1")
    ldswait("L_wo", 4, wocnt)
    stamp(6)
    e("s_movk_i32 s42, 0x2000\ns_mov_b32 s41, 0")
    for i in range(16):
        e(f"s_mov_b32 m0, {L_WO+i*1024}")
        if i: e("s_add_u32 s41, s41, s42")
        e(f"buffer_load_dwordx4 v{152+(i&1)}, s[36:39], s41 offen {wflags} lds")
    stamp(7)
    e("s_barrier")
    stamp(8)
    for w in range(8): e(f"ds_read_b64 v[{OB+2*w}:{OB+2*w+1}], v4 offset:{L_O+512*w}")
    e("s_waitcnt lgkmcnt(6)")
    e(f"v_mul_f32 v104, v{ms[0]}, v{OB}\nv_mul_f32 v105, v{ms[0]}, v{OB+1}\nv_mul_f32 v106, v{ms[1]}, v{OB+2}\nv_mul_f32 v107, v{ms[1]}, v{OB+3}")
    for w in range(2, 8, 2):
        e(f"s_waitcnt lgkmcnt({6-w})")
        e(f"v_fmac_f32 v104, v{ms[w]}, v{OB+2*w}\nv_fmac_f32 v105, v{ms[w]}, v{OB+2*w+1}")
        e(f"v_fmac_f32 v106, v{ms[w+1]}, v{OB+2*w+2}\nv_fmac_f32 v107, v{ms[w+1]}, v{OB+2*w+3}")
    e("v_add_f32 v104, v104, v106\nv_add_f32 v105, v105, v107")
    e("v_cvt_pk_bf16_f32 v138, v104, v105")
    pub("global_store_dwordx2 v166, v[138:139], s[26:27]")
    stamp(9)
    LO = 104
    def p1_loads():
        e(f"global_load_dwordx4 v[120:123], v157, s[26:27] {pollf1 or pollf}")
        for t, off in enumerate((0, 1024, 2048, 3072)): e(f"global_load_dwordx4 v[{LO+4*t}:{LO+4*t+3}], v6, s[26:27] offset:{off} {pollf1 or pollf}")
    p1_loads()
    e("s_waitcnt vmcnt(6)")
    if tailst: stamp(1)
    BO = 8
    for t in (2, 3, 0, 1):
        for tile in range(4):
            for half in range(2):
                r = BO + (t * 4 + tile) * 4 + half * 2
                e(f"ds_read_b64_tr_b16 v[{r}:{r+1}], v{TA[tile]} offset:{L_WO + t*4096 + half*512}")
    e(f"""
s_mov_b32 s45, {SPIN}
s_mov_b32 s59, 0
{"s_memrealtime s[64:65]" if tailst else ""}
s_branch L_p1chk
L_p1:
""")
    p1_loads()
    e("L_p1chk:")
    if tailst: e("s_add_u32 s59, s59, 1")
    e("s_waitcnt vmcnt(0)")
    e(f"v_xor_b32 v136, s55, v121\nv_xor_b32 v137, s55, v123")
    for k in range(4):
        e(f"v_bitop3_b32 v136, s55, v{LO+4*k+1}, v136 {XORACC}\nv_bitop3_b32 v137, s55, v{LO+4*k+3}, v137 {XORACC}")
    e(f"""
v_or_b32 v136, v136, v137
v_cmp_ne_u32 vcc, 0, v136
s_cbranch_vccz L_p1ok
s_sub_u32 s45, s45, 1
s_cbranch_scc0 L_p1
L_p1ok:
""")
    stamp(10)
    A2 = 72; A3 = 76; YD = 124
    Aop = [LO, LO + 8, A2, A3]
    side = []
    side += [f"v_mov_b32_dpp v{A3+k}, v{r} row_ror:8 {DPPF}" for k, r in enumerate((LO + 8, LO + 10, LO + 12, LO + 14))]
    side += [f"v_mov_b32 v{LO+1}, v{LO+2}", f"v_mov_b32 v{LO+2}, v{LO+4}", f"v_mov_b32 v{LO+3}, v{LO+6}", f"v_max_f32_dpp v121, v120, v120 row_ror:4 {DPPF}"]
    side += [f"v_mov_b32 v{LO+9}, v{LO+10}", f"v_mov_b32 v{LO+10}, v{LO+12}", f"v_max_f32_dpp v121, v121, v121 row_ror:2 {DPPF}", f"v_mov_b32 v{LO+11}, v{LO+14}"]
    side += [None, f"v_max_f32_dpp v121, v121, v121 row_ror:1 {DPPF}", "v_sub_f32 v120, v120, v121", "v_mul_f32 v120, s49, v120", "v_exp_f32 v120, v120", None, "v_mul_f32 v122, v120, v122",
             None, f"v_add_f32_dpp v122, v122, v122 row_ror:4 {DPPF}", None, f"v_add_f32_dpp v122, v122, v122 row_ror:2 {DPPF}", None, f"v_add_f32_dpp v122, v122, v122 row_ror:1 {DPPF}",
             "v_rcp_f32 v122, v122", None, "v_mul_f32 v120, v120, v122"]
    for k, r in enumerate((LO, LO + 2, LO + 4, LO + 6)): e(f"v_mov_b32_dpp v{A2+k}, v{r} row_ror:8 {DPPF}")
    e("s_waitcnt lgkmcnt(0)")
    si = 0
    for n_, t in enumerate((2, 3, 0, 1)):
        for tile in range(4):
            r = BO + (t * 4 + tile) * 4
            c = "0" if n_ == 0 else f"v[{YD+4*tile}:{YD+4*tile+3}]"
            e(f"v_mfma_f32_16x16x32_bf16 v[{YD+4*tile}:{YD+4*tile+3}], v[{Aop[t]}:{Aop[t]+3}], v[{r}:{r+3}], {c}")
            for _ in range(2):
                if si < len(side):
                    if side[si]: e(side[si])
                    si += 1
    assert si >= len(side)
    for tile in range(4):
        e(f"v_mul_f32_dpp v{80+tile}, v120, v{YD+4*tile} row_newbcast:0 {DPPF}")
    for r in range(1, 4):
        for tile in range(4):
            e(f"v_fmac_f32_dpp v{80+tile}, v120, v{YD+4*tile+r} row_newbcast:{r} {DPPF}")
    e(f"""
v_permlane16_swap_b32 v80, v81
v_permlane16_swap_b32 v82, v83
v_add_f32 v144, v80, v81
v_add_f32 v82, v82, v83
v_permlane32_swap_b32 v144, v82
v_add_u32 v144, 0x80, v144
v_and_or_b32 v144, v144, s53, v158
global_store_dwordx2 v161, v[144:145], s[26:27] {ystf}
""")
    if tailst:
        stamp(3)
        e("s_waitcnt lgkmcnt(0)\ns_mul_i32 s59, s59, 100\ns_add_u32 s68, s60, s59\ns_addc_u32 s69, s61, 0")
    e("s_cmp_lt_u32 s28, 4\ns_cbranch_scc0 L_fin")
    sets = [8 + 16 * k for k in range(npoll2)]
    def y_loads(b):
        for k in range(4): e(f"global_load_dwordx4 v[{b+4*k}:{b+4*k+3}], v155, s[26:27] offset:{1024*k} {pollf2}")
    e(f"s_mov_b32 s45, {SPIN}\ns_movk_i32 s47, 0xff")
    for b in sets[:-1]:
        y_loads(b)
        if stag: e(f"s_sleep {stag}")
    e("L_py:")
    F = 104
    for n_, b in enumerate(sets):
        y_loads(sets[n_ - 1])
        for k in range(4):
            e(f"s_waitcnt vmcnt({4*(npoll2-1)+3-k})")
            if k == 0:
                for j in range(4): e(f"v_xor_b32 v{72+j}, v{EX+j}, v{b+j}")
                for j in range(4): e(f"v_and_b32 v{F+j}, s53, v{b+j}")
            else:
                for j in range(4): e(f"v_bitop3_b32 v{72+j}, v{EX+j}, v{b+4*k+j}, v{72+j} {XORACC}")
                if k == 3:
                    e("v_or3_b32 v72, v72, v73, v74")
                    e("v_bitop3_b32 v72, v72, v75, s47 bitop3:0xa8")
                for j in range(4): e(f"v_and_b32 v{F+4+j}, s53, v{b+4*k+j}")
                if k == 3: e("v_cmp_ne_u32 vcc, 0, v72")
                for j in range(4): e(f"v_add_f32 v{F+j}, v{F+j}, v{F+4+j}")
        e("s_cbranch_vccz L_pyfin")
    e("s_sub_u32 s45, s45, 1\ns_cbranch_scc0 L_py")
    e("L_pyfin:")
    e(f"""
v_permlane32_swap_b32 v{F}, v{F+2}
v_permlane32_swap_b32 v{F+1}, v{F+3}
v_add_f32 v{F}, v{F}, v{F+2}
v_add_f32 v{F+1}, v{F+1}, v{F+3}
v_permlane16_swap_b32 v{F}, v{F+1}
v_add_f32 v{F}, v{F}, v{F+1}
v_add_f32_dpp v{F}, v{F}, v{F} row_ror:8 {DPPF}
v_mov_b32 v{F+1}, v{F}
v_permlane16_swap_b32 v{F}, v{F+1}
v_cvt_pk_bf16_f32 v{F}, v{F}, v{F+1}
v_lshlrev_b32 v{F+1}, 16, v{F}
v_and_b32 v{F+2}, s48, v{F}
v_add_f32 v{F+1}, v154, v{F+1}
v_cvt_pk_bf16_f32 v{F+1}, v{F+1}, v{F+1}
v_and_b32 v{F+1}, s48, v{F+1}
v_add_f32 v{F+1}, v{F+1}, v{F+2}
v_cvt_pk_bf16_f32 v{F+1}, v{F+1}, v{F+1}
s_mov_b32 exec_lo, 0xff
s_mov_b32 exec_hi, 0xff
global_store_short v156, v{F+1}, s[22:23]
s_mov_b64 exec, -1
L_fin:
""")
    stamp(11)
    stamp_out()
    e("L_end:\ns_endpgm")
    e.hist = []
    e("L_att:")
    if stamps:
        for i in range(1, NST): e(f"s_mov_b64 s[{60+2*i}:{61+2*i}], 0")
    stamp(1)
    e(f"""
{f"s_setprio {prio}" if prio else ""}
s_memrealtime s[54:55]
s_add_u32 s36, s8, s40
s_addc_u32 s37, s9, 0
s_and_b32 s37, s37, 0xffff
s_mov_b32 s38, 0x20000
s_mov_b32 s39, 0x20000
s_cmp_lg_u32 s30, 8
s_cbranch_scc1 L_noat
s_cmp_ge_u32 s2, 8
s_cbranch_scc1 L_noat
s_getreg_b32 s31, hwreg(HW_REG_XCC_ID, 0, 4)
s_and_b32 s31, s31, 7
s_lshl_b32 s31, s31, 1
s_or_b32 s31, s31, 1
s_lshl_b32 s44, s2, 5
v_mov_b32 v164, s44
s_waitcnt lgkmcnt(0)
s_lshl_b32 s54, s54, 4
s_or_b32 s31, s31, s54
v_mov_b32 v166, s31
s_mov_b64 exec, 1
global_store_dword v164, v166, s[24:25] sc1
s_mov_b64 exec, -1
L_noat:
""")
    if codepf:
        e(f"""
; pull this kernel's code into the XCD's L2 (one KiB per workgroup)
s_lshr_b32 s44, s2, 3
s_cmp_lg_u32 s30, 7
s_cbranch_scc1 L_nopf
s_cmp_ge_u32 s44, NKIB
s_cbranch_scc1 L_nopf
s_getpc_b64 s[46:47]
L_pc:
s_sub_u32 s46, s46, L_pc-{NAME}_kernel
s_subb_u32 s47, s47, 0
s_lshl_b32 s44, s44, 10
v_add_u32 v164, s44, v1
global_load_dwordx4 v[164:167], v164, s[46:47]
L_nopf:
""")
    for i in range(16): e(f"v_mov_b32 v{R+i}, 0")
    for i in range(8): e(f"v_mov_b32 v{ACC+i}, 0")
    e(f"""
v_mov_b32 v3, {L_FLAG}
v_and_b32 v6, 15, v0
v_lshrrev_b32 v5, 4, v0
v_lshl_add_u32 v4, v6, 2, v5
v_lshlrev_b32 v4, 3, v4
s_lshl_b32 s44, s43, 9
v_add_u32 v4, s44, v4
s_lshl_b32 s44, s43, 3
v_mov_b32 v5, s44
v_lshlrev_b32 v6, 4, v6
v_mov_b32 v7, 1
s_mov_b32 s47, {f2u(128 ** -0.5):#x}
s_mov_b32 s48, 0xffff0000
s_mov_b32 s49, {f2u(LOG2E):#x}
s_barrier
""")
    stamp(8)
    e(f"s_waitcnt vmcnt({depth-1})")
    first = [True]
    while issued[0] < qslot: issue()
    stamp(2)
    e(f"""
s_mov_b32 s45, {SPIN}
L_qwait:
ds_read_b32 v2, v3
s_waitcnt lgkmcnt(0)
v_readfirstlane_b32 s46, v2
s_cmp_lg_u32 s46, 0
s_cbranch_scc1 L_qok
s_sleep 1
s_sub_u32 s45, s45, 1
s_cbranch_scc0 L_qwait
L_qok:
ds_read_b128 v[{Q}:{Q+3}], v6 offset:{L_Q}
s_waitcnt lgkmcnt(0)
""")
    stamp(3)
    need(15)
    for i in range(0, 16, 4):
        for k in range(4):
            for j in range(4): e(f"v_dot2c_f32_bf16 v{R+i+j}, v{KB+4*(i+j)+k}, v{Q+k}")
    issue()
    for i in range(8): e(f"v_add_f32_dpp v{R+i}, v{R+i}, v{R+i} row_ror:8 row_mask:0xf bank_mask:0x3")
    for i in range(8): e(f"v_add_f32_dpp v{R+i}, v{R+i+8}, v{R+i+8} row_ror:8 row_mask:0xf bank_mask:0xc")
    for i in range(4): e(f"v_add_f32_dpp v{R+i}, v{R+i}, v{R+i} row_half_mirror row_mask:0xf bank_mask:0x5")
    for i in range(4): e(f"v_add_f32_dpp v{R+i}, v{R+i+4}, v{R+i+4} row_half_mirror row_mask:0xf bank_mask:0xa")
    for i in range(4): e(f"v_add_f32_dpp v{R+i}, v{R+i}, v{R+i} quad_perm:[1,0,3,2] {DPPF}")
    for i in range(4): e(f"v_add_f32_dpp v{R+i}, v{R+i}, v{R+i} quad_perm:[2,3,0,1] {DPPF}")
    S0 = R
    def rnd4():
        e(f"v_cvt_pk_bf16_f32 v{S0+4}, v{S0}, v{S0+1}")
        e(f"v_cvt_pk_bf16_f32 v{S0+5}, v{S0+2}, v{S0+3}")
        e(f"v_lshlrev_b32 v{S0}, 16, v{S0+4}")
        e(f"v_and_b32 v{S0+1}, s48, v{S0+4}")
        e(f"v_lshlrev_b32 v{S0+2}, 16, v{S0+5}")
        e(f"v_and_b32 v{S0+3}, s48, v{S0+5}")
    rnd4()
    for i in range(4): e(f"v_mul_f32 v{S0+i}, s47, v{S0+i}")
    rnd4()
    M = S0 + 6; T = S0 + 5
    e(f"v_max3_f32 v{M}, v{S0}, v{S0+1}, v{S0+2}")
    e(f"v_max_f32 v{M}, v{M}, v{S0+3}")
    e(f"v_max_f32_dpp v{M}, v{M}, v{M} row_ror:4 {DPPF}")
    e(f"v_max_f32_dpp v{M}, v{M}, v{M} row_ror:8 {DPPF}")
    e(f"v_mov_b32 v{T}, v{M}")
    e(f"v_permlane16_swap_b32 v{M}, v{T}")
    e(f"v_max_f32 v{M}, v{M}, v{T}")
    e(f"v_mov_b32 v{T}, v{M}")
    e(f"v_permlane32_swap_b32 v{M}, v{T}")
    e(f"v_max_f32 v{M}, v{M}, v{T}")
    for i in range(4): e(f"v_sub_f32 v{S0+i}, v{S0+i}, v{M}")
    for i in range(4): e(f"v_mul_f32 v{S0+i}, s49, v{S0+i}")
    for i in range(4): e(f"v_exp_f32 v{S0+i}, v{S0+i}")
    PL = S0 + 8; PH = S0 + 12
    for i in range(4): e(f"v_cvt_pk_bf16_f32 v{PL+i}, v{S0+i}, 0")
    for i in range(4): e(f"v_lshlrev_b32 v{PH+i}, 16, v{PL+i}")
    issue()
    Lr = S0 + 4
    e(f"v_add_f32 v{Lr}, v{S0}, v{S0+1}")
    e(f"v_add_f32 v{T}, v{S0+2}, v{S0+3}")
    e(f"v_add_f32 v{Lr}, v{Lr}, v{T}")
    e(f"v_add_f32_dpp v{Lr}, v{Lr}, v{Lr} row_ror:4 {DPPF}")
    e(f"v_add_f32_dpp v{Lr}, v{Lr}, v{Lr} row_ror:8 {DPPF}")
    e(f"v_mov_b32 v{T}, v{Lr}")
    e(f"v_permlane16_swap_b32 v{Lr}, v{T}")
    e(f"v_add_f32 v{Lr}, v{Lr}, v{T}")
    e(f"v_mov_b32 v{T}, v{Lr}")
    e(f"v_permlane32_swap_b32 v{Lr}, v{T}")
    e(f"v_add_f32 v{M+1}, v{Lr}, v{T}")
    assert M % 2 == 0
    e(f"ds_write_b64 v5, v[{M}:{M+1}] offset:{L_ML}")
    e("s_mov_b64 exec, 1\nds_add_u32 v3, v7 offset:12\ns_mov_b64 exec, -1")
    stamp(4)
    nv = 0; since = 0
    while nv < 16:
        if issued[0] < 32 and (16 + nv > known[0] or since >= 6):
            issue(); since = 0; continue
        need(16 + nv)
        e(pv(VB, nv, ACC, PL + (nv & 3), PH + (nv & 3), 4 * (nv >> 2)))
        nv += 1; since += 1
        if nv == 13: stamp(5)
    stamp(6)
    red8(ACC)
    e(f"ds_write_b64 v4, v[{ACC}:{ACC+1}] offset:{L_O}")
    e("s_waitcnt lgkmcnt(0)")
    stamp(7)
    e("s_barrier")
    if stamps: e("s_setprio 0\ns_sleep 40")
    stamp_out()
    e("s_endpgm\nL_codeend:")
    hdr = open("cdna_kernels/" + NAME + ".s.ref").read().split("; Override launch")[0]
    return hdr + f"""; @launch grid=(256,1,1) block=(576,1,1) lds={L_SIZE}
.amdgcn_target "amdgcn-amd-amdhsa--gfx950"
.text
.globl {NAME}_kernel
.p2align 8
.type {NAME}_kernel,@function
.set NKIB, (L_codeend-{NAME}_kernel)/1024
{NAME}_kernel:
{e.text()}
.section .rodata,"a"
.p2align 6
.amdhsa_kernel {NAME}_kernel
  .amdhsa_next_free_vgpr 168
  .amdhsa_next_free_sgpr 96
  .amdhsa_accum_offset 168
  .amdhsa_group_segment_fixed_size 0
  .amdhsa_kernarg_size 96
  .amdhsa_user_sgpr_count 2
  .amdhsa_user_sgpr_kernarg_segment_ptr 1
  .amdhsa_system_sgpr_workgroup_id_x 1
.end_amdhsa_kernel
"""
if __name__ == "__main__":
    V = {"a": dict(), "p0": dict(prio=0), "f2": dict(pollf2="sc1"), "f2np1": dict(pollf2="sc1", npoll2=1), "f2np2": dict(pollf2="sc1", npoll2=2, stag=4), "y01": dict(ystf="sc0 sc1"), "ynt": dict(ystf="sc1 nt"),
         "f1": dict(pollf1="sc1"), "f1nt": dict(pollf1="nt"), "f201": dict(pollf2="sc0 sc1", ystf="sc0 sc1")}
    names = []
    for k, v in V.items():
        v = {**dict(npoll2=4, stag=3), **v}
        open(f"k9_{k}_st.s", "w").write(gen(stamps=True, slotstamps=True, tailst=True, **v)); names.append(f"k9_{k}_st.s")
        open(f"k9_{k}.s", "w").write(gen(**v))
    print(" ".join(names))
```
